```python
import torch

def _softmax(x, axis=-1):
    return torch.softmax(x, dim=axis)
def _gelu(x):
    return torch.nn.functional.gelu(x, approximate="tanh")
def _silu(x):
    return torch.nn.functional.silu(x)
def _sigmoid(x):
    return torch.sigmoid(x)
def _layernorm(x, axis=-1, eps=1e-5):
    m = x.mean(dim=axis, keepdim=True)
    v = x.var(dim=axis, keepdim=True, unbiased=False)
    return (x - m) / torch.sqrt(v + eps)
def _scatter_add(tgt, idx, src, axis=0):
    return tgt.clone().index_add_(axis, idx, src)
def _segment_sum(src, seg, n):
    out = torch.zeros((n,) + src.shape[1:], dtype=src.dtype)
    return out.index_add_(0, seg, src)
def _pad(x, pw):
    flat = tuple(v for pair in reversed(pw) for v in pair)
    return torch.nn.functional.pad(x, flat)

kernel_name = 'gated_mix__ssm_conv_s5__dense_activation_relu__prompt'

def setup_inputs():

    _w = (lambda a: (lambda t: t.to(torch.bfloat16) if t.is_floating_point() else t)(torch.as_tensor(a)))
    def _A_setup():
        B, S, D = 1, 2048, 512
        P = D
        Lambda_re = -0.5 * (lambda _x: torch.exp(torch.as_tensor(_x)))((lambda *s: torch.randn(*s, dtype=torch.bfloat16) * 0.8)(P))
        Lambda_im = (lambda *s: torch.randn(*s, dtype=torch.bfloat16) * 0.8)(P) * 1.0
        B_re = (lambda *s: torch.randn(*s, dtype=torch.bfloat16) * 0.8)(P, D) * (D ** -0.5)
        B_im = (lambda *s: torch.randn(*s, dtype=torch.bfloat16) * 0.8)(P, D) * (D ** -0.5)
        C_re = (lambda *s: torch.randn(*s, dtype=torch.bfloat16) * 0.8)(D, P) * (P ** -0.5)
        C_im = (lambda *s: torch.randn(*s, dtype=torch.bfloat16) * 0.8)(D, P) * (P ** -0.5)
        log_dt = (lambda *s: torch.randn(*s, dtype=torch.bfloat16) * 0.8)(P) * 0.3 - 2.0
        Dskip = (lambda *s: torch.randn(*s, dtype=torch.bfloat16) * 0.8)(D)
        return {
            "x": _w((lambda *s: torch.randn(*s, dtype=torch.bfloat16) * 0.05)(B, S, D)),
            "Lambda_re": _w(Lambda_re),
            "Lambda_im": _w(Lambda_im),
            "B_re": _w(B_re),
            "B_im": _w(B_im),
            "C_re": _w(C_re),
            "C_im": _w(C_im),
            "log_dt": _w(log_dt),
            "Dskip": _w(Dskip),
        }
    _A_in = _A_setup()

    def _B_setup():
        B, S, D, Dff = 1, 2048, 512, 1792
        return {
            "x": _w((lambda *s: torch.randn(*s, dtype=torch.bfloat16) * 0.05)(B, S, D)),
            "w1": _w((lambda *s: torch.randn(*s, dtype=torch.bfloat16) * 0.05)(D, Dff)),
            "w2": _w((lambda *s: torch.randn(*s, dtype=torch.bfloat16) * 0.05)(Dff, D)),
        }
    _B_in = _B_setup()

    return {
        "A_x": _A_in["x"],
        "A_Lambda_re": _A_in["Lambda_re"],
        "A_Lambda_im": _A_in["Lambda_im"],
        "A_B_re": _A_in["B_re"],
        "A_B_im": _A_in["B_im"],
        "A_C_re": _A_in["C_re"],
        "A_C_im": _A_in["C_im"],
        "A_log_dt": _A_in["log_dt"],
        "A_Dskip": _A_in["Dskip"],
        "B_x": _B_in["x"],
        "B_w1": _B_in["w1"],
        "B_w2": _B_in["w2"],
        "gate_w": _w((lambda *s: torch.randn(*s, dtype=torch.bfloat16) * 0.05)(512) * 16.0),
    }

def reference(A_x, A_Lambda_re, A_Lambda_im, A_B_re, A_B_im, A_C_re, A_C_im, A_log_dt, A_Dskip, B_x, B_w1, B_w2, gate_w):
    def _A_ref(x, Lambda_re, Lambda_im, B_re, B_im, C_re, C_im, log_dt, Dskip):
        Bsz, L, H = x.shape
        Lam = Lambda_re + 1j * Lambda_im
        Bmat = B_re + 1j * B_im
        Cmat = C_re + 1j * C_im
        dt = torch.exp(log_dt)
        Lam_bar = torch.exp(dt * Lam)
        B_bar = ((Lam_bar - 1.0) / Lam)[:, None] * Bmat
        Bu = torch.einsum("bld,pd->blp", x + 0j, B_bar)
        h = torch.zeros_like(Bu[:, 0, :])
        hs = []
        for t in range(L):
            h = Lam_bar[None, :] * h + Bu[:, t, :]
            hs.append(h)
        hseq = torch.stack(hs, 1)
        y = 2.0 * torch.einsum("blp,dp->bld", hseq, Cmat).real + x * Dskip[None, None, :]
        return y

    def _B_ref(x, w1, w2):
        h = torch.einsum("bsd,df->bsf", x, w1)
        zero = torch.zeros_like(h)
        h = torch.maximum(h, zero)
        return torch.einsum("bsf,fd->bsd", h, w2)

    x = A_x
    g = _sigmoid((x * gate_w).sum(-1, keepdims=True))
    a = _A_ref(x, A_Lambda_re, A_Lambda_im, A_B_re, A_B_im, A_C_re, A_C_im, A_log_dt, A_Dskip)
    b = _B_ref(x, B_w1, B_w2)
    return g * a + (1 - g) * b
```

```python
import re

TRANS = ("v_exp_f32", "v_log_f32", "v_rcp_f32", "v_rsq_f32", "v_sqrt_f32", "v_sin_f32", "v_cos_f32")

def _regs(tok):
    tok = tok.strip()
    tok = tok.lstrip("-")
    m = re.fullmatch(r"abs\((.*)\)", tok)
    if m: tok = m.group(1)
    tok = tok.strip("|")
    m = re.fullmatch(r"([vas])(\d+)", tok)
    if m: return {m.group(1) + m.group(2)}
    m = re.fullmatch(r"([vas])\[(\d+):(\d+)\]", tok)
    if m: return {m.group(1) + str(i) for i in range(int(m.group(2)), int(m.group(3)) + 1)}
    if tok in ("vcc",): return {"vcc_lo", "vcc_hi"}
    if tok in ("vcc_lo", "vcc_hi", "m0"): return {tok}
    if tok == "exec": return {"exec_lo", "exec_hi"}
    if tok in ("exec_lo", "exec_hi"): return {tok}
    return set()

class Ins:
    def __init__(self, text):
        self.text = text
        t = text.split(";")[0].strip()
        self.is_label = t.endswith(":")
        self.op = t.split()[0] if t else ""
        rest = t[len(self.op):].strip()
        ops = []; cur = ""; depth = 0
        for ch in rest:
            if ch in "[(": depth += 1
            if ch in "])": depth -= 1
            if ch == "," and depth == 0:
                ops.append(cur.strip()); cur = ""
            else: cur += ch
        if cur.strip(): ops.append(cur.strip())
        mods = ""
        if ops:
            parts = ops[-1].split()
            ops[-1] = parts[0]; mods = " ".join(parts[1:])
        self.ops = ops; self.mods = mods
        op = self.op
        self.w = set(); self.r = set()
        self.mfma = op.startswith("v_mfma")
        self.valu = op.startswith("v_") and not self.mfma
        self.salu = op.startswith("s_") and not op.startswith(("s_load", "s_waitcnt", "s_nop", "s_barrier", "s_branch", "s_cbranch", "s_endpgm", "s_sleep", "s_memtime", "s_memrealtime", "s_setprio"))
        self.vmem = op.startswith(("buffer_", "global_"))
        self.ds = op.startswith("ds_")
        self.lds_dma = self.vmem and (" lds" in (" " + mods) or "load_lds" in op)
        self.store = self.vmem and ("store" in op or "atomic" in op)
        self.C = set(); self.AB = set(); self.data = set()
        R = [_regs(o) for o in ops]
        if self.is_label or not op: return
        if self.mfma:
            self.w = R[0]; self.AB = R[1] | R[2]; self.C = R[3]; self.r = self.AB | self.C
        elif self.valu:
            if op.startswith("v_cmp"):
                self.w = R[0]; self.r = set().union(*R[1:])
            elif op.startswith(("v_permlane32_swap", "v_permlane16_swap", "v_swap")):
                self.w = R[0] | R[1]; self.r = R[0] | R[1]
            elif op.startswith(("v_add_co", "v_sub_co", "v_addc_co", "v_subb_co", "v_subrev_co")):
                self.w = R[0] | R[1]; self.r = set().union(*R[2:])
            else:
                self.w = R[0]; self.r = set().union(*R[1:]) if len(R) > 1 else set()
                if op.startswith(("v_fmac", "v_dot2c", "v_mac", "v_writelane")): self.r |= R[0]
                if op.startswith("v_cndmask") and len(R) == 3: self.r |= {"vcc_lo", "vcc_hi"}
        elif self.vmem:
            if self.lds_dma:
                self.r = set().union(*R) | {"m0"}
            elif self.store:
                self.r = set().union(*R)
                self.data = R[0] if op.startswith("buffer_") else R[1]
            elif op in ("buffer_wbl2", "buffer_inv"):
                pass
            else:
                self.w = R[0]; self.r = set().union(*R[1:])
        elif self.ds:
            if op.startswith(("ds_read", "ds_bpermute", "ds_permute", "ds_swizzle")):
                self.w = R[0]; self.r = set().union(*R[1:])
            else:
                self.r = set().union(*R)
        elif op.startswith("s_"):
            if op.startswith(("s_cmp", "s_cbranch", "s_branch", "s_waitcnt", "s_nop", "s_barrier", "s_endpgm", "s_sleep", "s_setprio", "s_bitcmp")):
                self.r = set().union(*R) if R else set()
            else:
                self.w = R[0] if R else set(); self.r = set().union(*R[1:]) if len(R) > 1 else set()
    def states(self):
        if self.is_label or not self.op: return 0
        if self.op == "s_nop": return int(self.ops[0], 0) + 1
        return 1

def need(p, c):
    n = 0
    sg = lambda S: {x for x in S if x[0] == "s" or x.startswith("vcc")}
    vg = lambda S: {x for x in S if (x[0] in "va") and not x.startswith("vcc")}
    if p.valu:
        if c.mfma and (vg(p.w) & c.r): n = max(n, 2)
        if c.vmem and (sg(p.w) & c.r): n = max(n, 5)
        if c.valu and (sg(p.w) & c.r): n = max(n, 4 if c.op.startswith(("v_readlane", "v_writelane")) else 2)
        if c.salu and (sg(p.w) & c.r): n = max(n, 1)
        if c.op.startswith("s_cbranch_vcc") and (p.w & {"vcc_lo", "vcc_hi"}): n = max(n, 2)
        if c.op.startswith(("v_readlane", "v_readfirstlane")) and (vg(p.w) & c.r): n = max(n, 1)
        if c.op.startswith("v_permlane") and (vg(p.w) & c.r): n = max(n, 2)
        if c.valu and ("dpp" in c.op or "row_" in c.mods or "quad_perm" in c.mods) and (vg(p.w) & c.r): n = max(n, 2)
        if p.op.startswith(TRANS) and c.valu and (p.w & c.r): n = max(n, 1)
        if p.op.startswith(TRANS) and (c.ds or c.vmem) and (p.w & c.r): n = max(n, 1)
        if p.op.startswith("v_dot2") and (p.w & (c.r | c.w)):
            if not (c.op == p.op and not (p.w & set().union(*[_regs(o) for o in c.ops[1:3]]))): n = max(n, 3)
        if ("op_sel" in p.mods or "sdwa" in p.op or "dst_sel" in p.mods) and c.valu and (p.w & (c.r | c.w)): n = max(n, 1)
    if p.mfma:
        passes = 8 if "32x32x16" in p.op else 4
        big = {4: 8, 8: 12}[passes]; mid = {4: 6, 8: 10}[passes]; war = {4: 3, 8: 7}[passes]
        if c.mfma:
            if p.w & c.AB: n = max(n, big)
            if p.w & c.C:
                if not (p.w == c.C and p.op == c.op): n = max(n, mid)
            if (p.w & c.w) and not (p.w & c.C): n = max(n, mid)
        else:
            if (c.valu or c.vmem or c.ds) and (p.w & (c.r | c.w)): n = max(n, big)
            if c.valu and (p.C & c.w): n = max(n, war)
    if p.salu and "m0" in p.w and c.lds_dma: n = max(n, 1)
    if p.store and len(p.data) >= 3 and (p.data & c.w): n = max(n, 2)
    return n

def pad(lines):
    out = []
    for text in lines:
        for t in text.split("\n"):
            if not t.strip(): continue
            c = Ins(t)
            if c.op.startswith(".") or (t.strip().startswith(";")):
                out.append(c); continue
            if not c.is_label:
                req = 0; dist = 0
                for p in reversed(out):
                    if p.op.startswith(".") : continue
                    if dist >= 13: break
                    if p.op and not p.is_label:
                        k = need(p, c) - dist
                        if k > req: req = k
                    dist += p.states()
                if req > 0:
                    out.append(Ins(f"s_nop {req - 1}"))
            out.append(c)
    return [i.text for i in out]

class Asm:
    def __init__(self):
        self.L = []; self.vm = 0; self.lg = 0
        self.vm_done = 0; self.lg_done = 0
    def e(self, s):
        self.L.append(s)
    def vmem(self, s):
        self.L.append(s); self.vm += 1
        assert self.vm - self.vm_done <= 63, "too many outstanding vmem ops"
        return self.vm
    def ds(self, s):
        self.L.append(s); self.lg += 1
        return self.lg
    def wait(self, vm=None, lg=None):
        parts = []
        if vm is not None and vm > self.vm_done:
            n = self.vm - vm
            assert n <= 63
            parts.append(f"vmcnt({n})"); self.vm_done = vm
        if lg is not None and lg > self.lg_done:
            n = min(self.lg - lg, 15)
            parts.append(f"lgkmcnt({n})"); self.lg_done = self.lg - n
        if parts: self.L.append("s_waitcnt " + " ".join(parts))
    def wait_all_lg(self): self.wait(lg=self.lg)
    def wait_all_vm(self): self.wait(vm=self.vm)
    def text(self):
        return "\n".join(pad(self.L)) + "\n"
```

```python
import sys
from asmlib import Asm

KNAME = "gated_mix__ssm_conv_s5__dense_activation_relu__prompt_kernel"
HEADER = open("gated_mix__ssm_conv_s5__dense_activation_relu__prompt.s.ref").read().split("; Override")[0]

RT_PITCH = 44 * 4096
WS_FLAGM = 0xB00000
WS_FLAGS = 0xB20000
WS_AGG   = 0xB40000
WS_GZ    = 0xB60000
WS_STAMP = 0xB70000
WS_SIZE  = 0xB80000
OOB = 0x40000000
L_MISC = 131072
L_GATE = L_MISC
L_EBUF = L_MISC + 4096
L_TRP  = L_MISC + 8192
L_RG   = L_MISC + 26624
LDS_BYTES = L_MISC + 28672
RING = [65536, 98304, 0, 32768]

def gen(HD=12, AG_STEP=8, FS_STEP=22, stamps=False, SPIN=20000):
    A = Asm(); e = A.e
    sW, sRB, sCB, sM2, sN2, sROT1, sROT2, sN0, sN1 = 3, 4, 5, 6, 7, 8, 9, 10, 11
    X, W1, BRE, BIM, W2, CRE, CIM, WS, OUT, AGG = [f"s[{b}:{b+3}]" for b in range(48, 88, 4)]
    sXB, sWB, sM0, sKC, sT0, sT1, sT2, sT3, sH0, sH1, sCNT = 88, 89, 90, 91, 92, 93, 94, 95, 96, 97, 98
    stamp_regs = [16, 22, 24, 26, 28, 34, 36, 38, 18, 20, 30, 40]
    nstamp = [0]
    def stamp(name):
        if stamps:
            r = stamp_regs[nstamp[0]]; nstamp[0] += 1
            e(f"s_memtime s[{r}:{r+1}]")
    def srd(base, ptr, size):
        e(f"s_mov_b32 s{base}, s{ptr}\ns_mov_b32 s{base+1}, s{ptr+1}\ns_mov_b32 s{base+2}, {size:#x}\ns_mov_b32 s{base+3}, 0x20000")

    e(f"{KNAME}:")
    e("s_cmp_ge_u32 s2, 256\ns_cbranch_scc1 L_end")
    e("s_load_dwordx16 s[16:31], s[0:1], 0")
    e("s_load_dwordx16 s[32:47], s[0:1], 64")
    e("s_memrealtime s[12:13]")
    if stamps: e("s_memtime s[14:15]")
    e("v_lshrrev_b32 v1, 6, v0")
    e("v_and_b32 v0, 63, v0")
    e(f"v_readfirstlane_b32 s{sW}, v1")
    e(f"s_and_b32 s{sT0}, s2, 7\ns_lshr_b32 s{sT1}, s2, 3")
    e(f"s_and_b32 s{sN2}, s{sT1}, 7\ns_lshr_b32 s{sT2}, s{sT1}, 3")
    e(f"s_and_b32 s{sRB}, s{sT0}, 1\ns_lshl_b32 s{sRB}, s{sRB}, 3\ns_add_u32 s{sRB}, s{sRB}, s{sN2}")
    e(f"s_lshr_b32 s{sCB}, s{sT0}, 1\ns_lshl_b32 s{sCB}, s{sCB}, 2\ns_add_u32 s{sCB}, s{sCB}, s{sT2}")
    e(f"s_lshl_b32 s{sM2}, s{sT0}, 2\ns_add_u32 s{sM2}, s{sM2}, s{sT2}")
    e(f"s_lshl_b32 s{sT2}, s{sT2}, 1\ns_add_u32 s{sROT2}, s{sT2}, s{sN2}\ns_and_b32 s{sROT1}, s{sROT2}, 7")
    e(f"s_cmp_ge_u32 s{sROT2}, 7\ns_cselect_b32 s{sT2}, 7, 0\ns_sub_u32 s{sROT2}, s{sROT2}, s{sT2}")
    e(f"s_lshl_b32 s{sXB}, s{sRB}, 2\ns_add_u32 s{sXB}, s{sXB}, s{sW}\ns_lshl_b32 s{sXB}, s{sXB}, 15")
    e(f"s_lshr_b32 s{sT0}, s{sCB}, 2\ns_mul_i32 s{sT0}, s{sT0}, 7\ns_and_b32 s{sT1}, s{sCB}, 3\ns_lshl_b32 s{sT2}, s{sT1}, 1\ns_add_u32 s{sT0}, s{sT0}, s{sT2}")
    e(f"s_mov_b32 s99, s{sT0}")
    e(f"s_lshl_b32 s{sT0}, s{sT0}, 7\ns_mul_i32 s{sWB}, s{sW}, {16*3584}\ns_add_u32 s{sWB}, s{sWB}, s{sT0}")
    e(f"s_lshl_b32 s{sM0}, s{sW}, 12")
    e(f"s_cmp_eq_u32 s{sT1}, 3\ns_cselect_b32 s{sT3}, {OOB:#x}, 0")
    e("v_lshrrev_b32 v1, 4, v0\nv_and_b32 v2, 7, v0\nv_xor_b32 v2, v2, v1\nv_lshlrev_b32 v2, 4, v2")
    e("v_lshrrev_b32 v3, 5, v0\nv_lshlrev_b32 v3, 14, v3")
    e("v_bfe_u32 v4, v0, 3, 2\nv_lshl_add_u32 v3, v4, 10, v3")
    e("v_add_u32 v4, v3, v2\nv_xor_b32 v28, 64, v2\nv_add_u32 v5, v3, v28\nv_add_u32 v5, 3072, v5")
    e("v_add_u32 v6, 6144, v4\nv_add_u32 v7, 6144, v5")
    e("v_and_b32 v8, 15, v0\nv_lshlrev_b32 v9, 2, v1\nv_xor_b32 v8, v8, v9")
    e(f"v_mov_b32 v9, s{sT3}\nv_cmp_lt_u32 vcc, 7, v8\nv_cndmask_b32 v9, 0, v9, vcc")
    e("v_lshl_add_u32 v8, v8, 4, v9\nv_mul_u32_u24 v9, 3584, v1\nv_add_u32 v8, v8, v9")
    e("v_add_u32 v9, 13312, v8\nv_add_u32 v10, 26624, v8\nv_add_u32 v11, 39936, v8")
    e("v_and_b32 v29, 31, v0")
    e(f"v_lshl_add_u32 v30, s{sCB}, 5, v29\nv_lshlrev_b32 v30, 1, v30")
    e("v_lshlrev_b32 v31, 4, v0")
    e("s_waitcnt lgkmcnt(0)")
    srd(48, 16, 2048 * 1024); srd(52, 36, 512 * 3584)
    e(f"s_mov_b32 s{sKC}, s{sROT1}")
    chunk_tok = {}
    def issue_chunk(c):
        slot = c & 3
        e(f"s_lshl_b32 s{sT0}, s{sKC}, 7\ns_add_u32 s{sT0}, s{sT0}, s{sXB}")
        e(f"s_add_u32 m0, s{sM0}, {slot*32768}")
        e(f"s_mul_i32 s{sT1}, s{sKC}, {64*3584}")
        for i in range(4):
            A.vmem(f"buffer_load_dwordx4 v{4+i}, {X}, s{sT0} offen offset:{i*1024} lds")
        e(f"s_add_u32 s{sT1}, s{sT1}, s{sWB}")
        e(f"s_add_u32 m0, s{sM0}, {slot*32768+16384}")
        e(f"s_add_u32 s{sKC}, s{sKC}, 1")
        for i in range(4):
            t = A.vmem(f"buffer_load_dwordx4 v{8+i}, {W1}, s{sT1} offen offset:{i*1024} lds")
        e(f"s_and_b32 s{sKC}, s{sKC}, 7")
        chunk_tok[c] = t
    issue_chunk(0)
    tp0 = A.vmem("global_load_ushort v32, v30, s[18:19]")
    tp1 = A.vmem("global_load_ushort v33, v30, s[20:21]")
    tp2 = A.vmem("global_load_ushort v34, v30, s[30:31]")
    e(f"s_lshl_b32 s{sT0}, s{sW}, 10\ns_add_u32 m0, s{sT0}, {L_GATE}")
    e("s_nop 0")
    tgate = A.vmem("global_load_lds_dwordx4 v31, s[40:41]")
    e(f"s_or_b32 s12, s12, 1\ns_or_b32 s{sT0}, s2, s{sW}\ns_cmp_lg_u32 s{sT0}, 0\ns_cbranch_scc1 L_nononce")
    e("v_mov_b32 v1, s12\nv_mov_b32 v2, 0\ns_mov_b64 exec, 1")
    e("global_store_dword v2, v1, s[44:45] sc1")
    e("s_mov_b64 exec, -1")
    e("L_nononce:")
    for c in (1, 2, 3): issue_chunk(c)
    srd(56, 22, 512 * 1024); srd(60, 24, 512 * 1024); srd(64, 38, 1792 * 1024); srd(68, 26, 512 * 1024); srd(72, 28, 512 * 1024)
    srd(76, 46, WS_SIZE); srd(80, 42, 2048 * 2048)
    e(f"s_lshl_b32 s{sT0}, s{sCB}, 13\ns_sub_u32 s{sT1}, 16, s{sRB}\ns_lshl_b32 s{sT1}, s{sT1}, 9\ns_add_u32 s{sT0}, s{sT0}, s{sT1}\ns_add_u32 s{sT0}, s{sT0}, {WS_AGG:#x}")
    e(f"s_add_u32 s84, s46, s{sT0}\ns_addc_u32 s85, s47, 0\ns_lshl_b32 s86, s{sRB}, 9\ns_mov_b32 s87, 0x20000")
    e("v_lshrrev_b32 v1, 5, v0\nv_bfe_u32 v2, v0, 1, 3\nv_xor_b32 v2, v2, v1\nv_lshlrev_b32 v2, 4, v2")
    e(f"v_lshl_add_u32 v2, v29, 7, v2\nv_add_u32 v12, s{sM0}, v2")
    e("v_xor_b32 v13, 32, v12\nv_xor_b32 v14, 64, v12\nv_xor_b32 v15, 96, v12")
    e("v_bfe_u32 v2, v0, 2, 2")
    e("v_lshl_add_u32 v3, v1, 3, v2\nv_lshlrev_b32 v3, 8, v3")
    e("v_lshl_add_u32 v3, v2, 6, v3")
    e("v_bfe_u32 v2, v0, 4, 1\nv_lshl_add_u32 v3, v2, 5, v3")
    e("v_and_b32 v2, 3, v0\nv_lshl_add_u32 v3, v2, 3, v3")
    e("v_add_u32 v16, 16384, v3\nv_xor_b32 v17, 64, v16\nv_xor_b32 v18, 128, v16\nv_xor_b32 v19, 192, v16")
    e(f"s_lshl_b32 s{sT0}, s{sW}, 9\ns_add_u32 s{sT0}, s{sT0}, {L_EBUF}\nv_lshl_add_u32 v1, v0, 3, s{sT0}\nv_mov_b32 v2, 0\nv_mov_b32 v3, 0")
    A.ds("ds_write_b64 v1, v[2:3]")
    A.wait(vm=tp2)
    e("v_lshlrev_b32 v32, 16, v32\nv_lshlrev_b32 v33, 16, v33\nv_lshlrev_b32 v34, 16, v34")
    e("v_mul_f32 v34, 0x3fb8aa3b, v34\nv_exp_f32 v34, v34\nv_cvt_pk_bf16_f32 v34, v34, v34\nv_lshlrev_b32 v34, 16, v34")
    e("v_mul_f32 v35, v34, v32\nv_mul_f32 v36, v34, v33")
    e("v_mul_f32 v35, 0x3fb8aa3b, v35\nv_exp_f32 v35, v35")
    e("v_mul_f32 v36, 0.15915494, v36\nv_rndne_f32 v43, v36\nv_sub_f32 v36, v36, v43\nv_cos_f32 v37, v36\nv_sin_f32 v38, v36")
    e("v_mul_f32 v37, v35, v37\nv_mul_f32 v38, v35, v38")
    e("v_add_f32 v39, -1.0, v37")
    e("v_mul_f32 v40, v32, v32\nv_fmac_f32 v40, v33, v33\nv_rcp_f32 v40, v40\nv_add_f32 v40, v40, v40")
    e("v_mul_f32 v41, v39, v32\nv_fmac_f32 v41, v38, v33\nv_mul_f32 v41, v41, v40")
    e("v_mul_f32 v42, v38, v32\nv_fma_f32 v42, -v39, v33, v42\nv_mul_f32 v42, v42, v40")
    e("v_accvgpr_write_b32 a0, v37\nv_accvgpr_write_b32 a1, v38\nv_accvgpr_write_b32 a10, v41\nv_accvgpr_write_b32 a11, v42")
    def csq(dr, di, sr, si):
        e(f"v_mul_f32 v{dr}, v{sr}, v{sr}\nv_mul_f32 v{di}, v{sr}, v{si}\nv_fma_f32 v{dr}, -v{si}, v{si}, v{dr}\nv_add_f32 v{di}, v{di}, v{di}")
    def cmul(dr, di, ar, ai, br, bi):
        e(f"v_mul_f32 v{dr}, v{ar}, v{br}\nv_mul_f32 v{di}, v{ar}, v{bi}\nv_fma_f32 v{dr}, -v{ai}, v{bi}, v{dr}\nv_fmac_f32 v{di}, v{ai}, v{br}")
    csq(44, 45, 37, 38); csq(46, 47, 44, 45); csq(44, 45, 46, 47); csq(46, 47, 44, 45)
    csq(48, 49, 46, 47); csq(50, 51, 48, 49); csq(52, 53, 50, 51)
    csq(54, 55, 52, 53); csq(56, 57, 54, 55); csq(54, 55, 56, 57)
    e("v_accvgpr_write_b32 a2, v46\nv_accvgpr_write_b32 a3, v47\nv_accvgpr_write_b32 a6, v52\nv_accvgpr_write_b32 a7, v53\nv_accvgpr_write_b32 a8, v54\nv_accvgpr_write_b32 a9, v55")
    e("v_cmp_lt_u32 vcc, 31, v0\nv_cndmask_b32 v46, 1.0, v46, vcc\nv_cndmask_b32 v47, 0, v47, vcc")
    e(f"s_bitcmp1_b32 s{sW}, 0\ns_cselect_b64 vcc, -1, 0\nv_cndmask_b32 v48, 1.0, v48, vcc\nv_cndmask_b32 v49, 0, v49, vcc")
    e(f"s_bitcmp1_b32 s{sW}, 1\ns_cselect_b64 vcc, -1, 0\nv_cndmask_b32 v50, 1.0, v50, vcc\nv_cndmask_b32 v51, 0, v51, vcc")
    cmul(44, 45, 46, 47, 48, 49); cmul(46, 47, 44, 45, 50, 51)
    e("v_accvgpr_write_b32 a4, v46\nv_accvgpr_write_b32 a5, v47")

    T = [32, 48]; ACCM = 64; XF = 128
    def toggle_hi():
        for r in range(12, 20): e(f"v_xor_b32 v{r}, 0x10000, v{r}")
    wtok = {}; xtok = {}
    def w1_reads(n, m):
        c, s = n >> 2, n & 3
        off = (c & 1) * 32768 + 16 * s * 256
        t = T[n & 1] + 4 * m
        A.ds(f"ds_read_b64_tr_b16 v[{t}:{t+1}], v{16+m} offset:{off}")
        wtok[(n, m)] = A.ds(f"ds_read_b64_tr_b16 v[{t+2}:{t+3}], v{16+m} offset:{off + 1024}")
    def x_reads(c):
        for s in range(4):
            r = XF + 16 * c + 4 * s
            xtok[(c, s)] = A.ds(f"ds_read_b128 v[{r}:{r+3}], v{12+s} offset:{(c & 1) * 32768}")
    ring_tok = {}
    def issue_B(g):
        e(f"s_add_u32 s{sT0}, s{sROT1}, s{sW}\ns_add_u32 s{sT0}, s{sT0}, {4*g}\ns_and_b32 s{sT0}, s{sT0}, 7\ns_lshl_b32 s{sT0}, s{sT0}, 7")
        e(f"s_lshl_b32 s{sT1}, s{sCB}, 15\ns_add_u32 s{sT0}, s{sT0}, s{sT1}")
        e(f"s_lshl_b32 s{sT1}, s{sW}, 13\ns_add_u32 m0, s{sT1}, {g*32768}")
        e("s_nop 0")
        for i in range(4): A.vmem(f"buffer_load_dwordx4 v{8+i}, {BRE}, s{sT0} offen offset:{i*1024} lds")
        e(f"s_add_u32 m0, s{sT1}, {g*32768+4096}")
        e("s_nop 0")
        for i in range(4): t = A.vmem(f"buffer_load_dwordx4 v{8+i}, {BIM}, s{sT0} offen offset:{i*1024} lds")
        return t
    def mlp_unit(j, dst):
        e(f"s_add_u32 s{dst}, s{sROT2}, {j}\ns_cmp_ge_u32 s{dst}, 7\ns_cselect_b32 s{sT3}, 7, 0\ns_sub_u32 s{dst}, s{dst}, s{sT3}")
        e(f"s_mul_i32 s{sT3}, s{sW}, 7\ns_add_u32 s{dst}, s{dst}, s{sT3}")
    def issue_ring(j):
        pos = RING[j & 3]
        if j < 7:
            mlp_unit(j, sT0)
            e(f"s_lshl_b32 s{sT0}, s{sT0}, 16\ns_lshl_b32 s{sT1}, s{sN2}, 7\ns_add_u32 s{sT0}, s{sT0}, s{sT1}")
            srdn = W2; vb = 4
        else:
            jj = j - 7
            e(f"s_lshl_b32 s{sT0}, s{sW}, 8\ns_lshl_b32 s{sT1}, s{sN2}, 16\ns_add_u32 s{sT0}, s{sT0}, s{sT1}")
            if jj >> 1: e(f"s_add_u32 s{sT0}, s{sT0}, 128")
            srdn = CIM if jj & 1 else CRE; vb = 8
        e(f"s_lshl_b32 s{sT1}, s{sW}, 13\ns_add_u32 m0, s{sT1}, {pos}")
        e(f"s_add_u32 s{sT2}, s{sT0}, 32768")
        for i in range(4): A.vmem(f"buffer_load_dwordx4 v{vb+i}, {srdn}, s{sT0} offen offset:{i*1024} lds")
        e(f"s_add_u32 m0, s{sT1}, {pos+4096}")
        e("s_nop 0")
        for i in range(4): t = A.vmem(f"buffer_load_dwordx4 v{vb+i}, {srdn}, s{sT2} offen offset:{i*1024} lds")
        ring_tok[j] = t

    A.wait(vm=chunk_tok[0], lg=A.lg)
    e("s_barrier")
    stamp("chunk0 landed")
    x_reads(0)
    for m in range(4): w1_reads(0, m)
    btok = {}
    for n in range(32):
        c, s = n >> 2, n & 3
        if s == 3:
            if c < 7: A.wait(vm=chunk_tok[c + 1], lg=A.lg)
            else: A.wait(vm=btok[0], lg=A.lg)
            e("s_barrier")
            if c in (1, 3, 5): toggle_hi()
            if c < 7: x_reads(c + 1)
            if c < 4: issue_chunk(c + 4)
            if c == 3:
                e("v_lshrrev_b32 v1, 3, v0\nv_lshlrev_b32 v1, 10, v1\nv_lshrrev_b32 v2, 4, v0\nv_and_b32 v3, 7, v0\nv_xor_b32 v2, v2, v3")
                e("v_lshl_add_u32 v8, v2, 4, v1\nv_xor_b32 v9, 64, v8\nv_add_u32 v9, 7168, v9\nv_add_u32 v10, 14336, v8\nv_add_u32 v11, 14336, v9")
                e("v_bfe_u32 v2, v0, 4, 1\nv_lshlrev_b32 v2, 2, v2\nv_xor_b32 v2, v2, v3\nv_lshl_add_u32 v4, v2, 4, v1")
                e("v_add_u32 v5, 7168, v4\nv_add_u32 v6, 14336, v4\nv_add_u32 v7, 21504, v4")
                e("v_mov_b32 v1, 0")
                tnonce = A.vmem("global_load_dword v24, v1, s[44:45] sc1")
            if c == 4: btok[0] = issue_B(0)
            if c == 5: btok[1] = issue_B(1)
            if c == 6: issue_ring(0)
            if c == 7: issue_ring(1)
        for m in range(4):
            A.wait(lg=max(wtok[(n, m)], xtok[(c, s)]))
            t = T[n & 1] + 4 * m; xr = XF + 16 * c + 4 * s; acc = ACCM + 16 * m
            cin = "0" if n == 0 else f"v[{acc}:{acc+15}]"
            e(f"v_mfma_f32_32x32x16_bf16 v[{acc}:{acc+15}], v[{t}:{t+3}], v[{xr}:{xr+3}], {cin}")
            if n < 31: w1_reads(n + 1, m)
    stamp("mlp gemm done")
    for s in range(4): e(f"v_and_b32 v{12+s}, 0xfff, v{12+s}")
    e(f"v_lshrrev_b32 v16, 5, v0\nv_lshlrev_b32 v16, 4, v16\ns_lshl_b32 s{sT0}, s{sW}, 10\ns_add_u32 s{sT0}, s{sT0}, {L_GATE}\nv_add_u32 v16, s{sT0}, v16")
    e(f"s_mov_b32 s{sKC}, s{sROT1}")
    BF = [16, 24]
    GF = [20, 26]
    btk = {}
    def ssm_reads(n):
        c, s = n >> 2, n & 3
        if s == 0:
            e(f"s_lshl_b32 s{sT0}, s{sKC}, 7\nv_add_u32 v30, s{sT0}, v16\ns_add_u32 s{sKC}, s{sKC}, 1\ns_and_b32 s{sKC}, s{sKC}, 7")
        off = (c >> 2) * 32768 + (c & 3) * 8192
        b = BF[n & 1]; g = GF[n & 1]
        A.ds(f"ds_read_b128 a[{b}:{b+3}], v{12+s} offset:{off}")
        A.ds(f"ds_read_b128 a[{b+4}:{b+7}], v{12+s} offset:{off+4096}")
        btk[n] = A.ds(f"ds_read_b128 v[{g}:{g+3}], v30 offset:{32*s}")
    ssm_reads(0)
    e(f"s_lshl_b32 s{sT0}, s{sRB}, 2\ns_add_u32 s{sT0}, s{sT0}, s{sW}\ns_mul_i32 s{sH0}, s{sT0}, {RT_PITCH}")
    e(f"s_lshl_b32 s{sT1}, s99, 12\ns_add_u32 s{sT1}, s{sT1}, s{sH0}")
    e(f"s_and_b32 s{sT2}, s{sCB}, 3\ns_cmp_eq_u32 s{sT2}, 3\ns_cselect_b32 s{sT2}, {OOB:#x}, 4096\nv_add_u32 v1, s{sT2}, v31")
    for m in range(4):
        for kk in range(2):
            a0 = ACCM + 16 * m + 8 * kk
            for i in range(4):
                e(f"v_cvt_pk_bf16_f32 v{a0+i}, v{a0+2*i}, v{a0+2*i+1}")
            for i in range(4):
                e(f"v_pk_max_i16 v{a0+i}, v{a0+i}, 0")
            hm_tok = A.vmem(f"buffer_store_dwordx4 v[{a0}:{a0+3}], v{31 if m < 2 else 1}, {WS}, s{sT1} offen offset:{((m & 1) * 2 + kk) * 1024} sc1")
    stamp("hmlp stores issued")
    A.wait(vm=tnonce)
    e(f"v_readfirstlane_b32 s{sN0}, v24\ns_cmp_lg_u32 s{sN0}, 0\ns_cbranch_scc1 L_nonce_ok")
    e(f"s_mov_b32 s{sCNT}, {SPIN}\nv_mov_b32 v1, 0\nL_nonce_loop:\ns_sleep 2\nglobal_load_dword v24, v1, s[44:45] sc1\ns_waitcnt vmcnt(0)")
    e(f"v_readfirstlane_b32 s{sN0}, v24\ns_cmp_lg_u32 s{sN0}, 0\ns_cbranch_scc1 L_nonce_ok")
    e(f"s_sub_u32 s{sCNT}, s{sCNT}, 1\ns_cmp_lg_u32 s{sCNT}, 0\ns_cbranch_scc1 L_nonce_loop\nL_nonce_ok:")
    e(f"s_not_b32 s{sN1}, s{sN0}")
    def flag_store(base):
        e(f"s_lshl_b32 s{sT0}, s{sRB}, 2\ns_add_u32 s{sT0}, s{sT0}, s{sW}\ns_lshl_b32 s{sT0}, s{sT0}, 4\ns_add_u32 s{sT0}, s{sT0}, s{sCB}\ns_lshl_b32 s{sT0}, s{sT0}, 7\ns_add_u32 s{sT0}, s{sT0}, {base:#x}")
        e(f"v_mov_b32 v2, s{sN0}\nv_mov_b32 v3, s{sN1}\nv_mov_b32 v1, 0\ns_mov_b64 exec, 1")
        A.vmem(f"buffer_store_dwordx2 v[2:3], v1, {WS}, s{sT0} offen sc1")
        e("s_mov_b64 exec, -1")
    ACR, ACI = 32, 48
    DACC = [17, 18, 19, 25]
    for r in DACC: e(f"v_mov_b32 v{r}, 0")
    for n in range(32):
        c, s = n >> 2, n & 3
        if n == 15:
            A.wait(vm=btok[1], lg=A.lg)
            e("s_barrier")
            issue_ring(2)
        if n == 10:
            A.wait(vm=hm_tok)
            flag_store(WS_FLAGM)
            stamp("flagM")
        A.wait(lg=btk[n])
        b = BF[n & 1]; g = GF[n & 1]; xr = XF + 16 * c + 4 * s
        e(f"v_mfma_f32_32x32x16_bf16 v[{ACR}:{ACR+15}], v[{xr}:{xr+3}], a[{b}:{b+3}], " + ("0" if n == 0 else f"v[{ACR}:{ACR+15}]"))
        for i in range(2): e(f"v_dot2c_f32_bf16 v{DACC[i]}, v{xr+i}, v{g+i}")
        if n < 31: ssm_reads(n + 1)
        e(f"v_mfma_f32_32x32x16_bf16 v[{ACI}:{ACI+15}], v[{xr}:{xr+3}], a[{b+4}:{b+7}], " + ("0" if n == 0 else f"v[{ACI}:{ACI+15}]"))
        for i in range(2, 4): e(f"v_dot2c_f32_bf16 v{DACC[i]}, v{xr+i}, v{g+i}")
    stamp("ssm gemm done")
    for i in range(12): e(f"v_accvgpr_read_b32 v{128+i}, a{i}")
    Lr, Li, L16r, L16i, PWr, PWi, L128r, L128i, L1Kr, L1Ki, C2r, C2i = range(128, 140)
    def cfma(dr, di, lr, li, sr, si, ar, ai):
        e(f"v_fma_f32 v{dr}, v{lr}, v{sr}, v{ar}\nv_fma_f32 v{di}, v{lr}, v{si}, v{ai}\nv_fma_f32 v{dr}, -v{li}, v{si}, v{dr}\nv_fmac_f32 v{di}, v{li}, v{sr}")
    e("v_add_f32 v17, v17, v18\nv_add_f32 v19, v19, v25\nv_add_f32 v20, v17, v19\nv_mov_b32 v22, v20")
    pp = [(140, 141), (142, 143)]
    cur = (ACR, ACI)
    for v in range(1, 16):
        d = pp[v & 1]
        cfma(d[0], d[1], Lr, Li, cur[0], cur[1], ACR + v, ACI + v); cur = d
    Er, Ei = cur
    assert (Er, Ei) == (142, 143)
    e(f"s_lshl_b32 s{sT0}, s{sW}, 9\ns_add_u32 s{sT0}, s{sT0}, {L_EBUF}\nv_lshrrev_b32 v1, 5, v0\nv_lshlrev_b32 v1, 8, v1\nv_and_b32 v2, 31, v0\nv_lshl_add_u32 v1, v2, 3, v1\nv_add_u32 v144, s{sT0}, v1")
    A.ds(f"ds_write_b64 v144, v[{Er}:{Ei}] offset:{7*256}")
    e("v_permlane32_swap_b32 v20, v22\nv_add_f32 v20, v20, v22")
    e("v_bfe_u32 v1, v0, 2, 1\nv_lshlrev_b32 v1, 4, v1\nv_bfe_u32 v2, v0, 3, 2\nv_lshl_add_u32 v1, v2, 2, v1\nv_and_b32 v2, 3, v0\nv_add_u32 v1, v1, v2\nv_lshlrev_b32 v1, 4, v1")
    e(f"s_lshr_b32 s{sT0}, s{sXB}, 6\ns_add_u32 s{sT0}, s{sT0}, {WS_GZ:#x}\ns_cmp_eq_u32 s{sCB}, 0\ns_cselect_b32 s{sT1}, 0, {OOB:#x}\nv_add_u32 v1, s{sT1}, v1")
    e(f"v_mov_b32 v21, s{sN0}\nv_mov_b32 v22, v20\nv_mov_b32 v23, s{sN1}\ns_mov_b32 exec_hi, 0")
    A.wait(lg=A.lg)
    e("s_barrier")
    A.vmem(f"buffer_store_dwordx4 v[20:23], v1, {WS}, s{sT0} offen sc1")
    e("s_mov_b64 exec, -1")
    et = []
    for k in range(7): et.append(A.ds(f"ds_read_b64 v[{146+2*k}:{147+2*k}], v144 offset:{k*256}"))
    issue_ring(3)
    cur = (146, 147)
    for k in range(1, 7):
        A.wait(lg=et[k])
        d = [(140, 141), (160, 161)][k & 1]
        cfma(d[0], d[1], L16r, L16i, cur[0], cur[1], 146 + 2 * k, 147 + 2 * k); cur = d
    LOCr, LOCi = cur
    assert cur == (140, 141)
    e(f"s_cmp_lg_u32 s{sW}, 3\ns_cbranch_scc1 L_noagg")
    e(f"v_fma_f32 v20, v{L16r}, v{LOCr}, v{Er}\nv_fma_f32 v22, v{L16r}, v{LOCi}, v{Ei}\nv_fma_f32 v20, -v{L16i}, v{LOCi}, v20\nv_fmac_f32 v22, v{L16i}, v{LOCr}")
    e(f"s_lshl_b32 s{sT0}, s{sCB}, 4\ns_add_u32 s{sT0}, s{sT0}, 15\ns_sub_u32 s{sT0}, s{sT0}, s{sRB}\ns_lshl_b32 s{sT0}, s{sT0}, 9\ns_add_u32 s{sT0}, s{sT0}, {WS_AGG:#x}")
    e("v_and_b32 v1, 31, v0\nv_lshlrev_b32 v1, 4, v1\ns_mov_b32 exec_lo, 0")
    e(f"buffer_store_dwordx4 v[20:23], v1, {WS}, s{sT0} offen sc1")
    e("s_mov_b64 exec, -1\ns_nop 1\nL_noagg:")
    stamp("agg published")
    e(f"v_bfe_u32 v1, v0, 2, 1\nv_lshlrev_b32 v1, 4, v1\nv_and_b32 v2, 3, v0\nv_add_u32 v1, v1, v2\ns_lshl_b32 s{sT0}, s{sM2}, 5\ns_lshl_b32 s{sT1}, s{sW}, 2\ns_add_u32 s{sT0}, s{sT0}, s{sT1}\nv_add_u32 v1, s{sT0}, v1\nv_lshlrev_b32 v145, 7, v1")
    def flag_load(base, tracked=True):
        e(f"s_mov_b32 s{sT0}, {base:#x}\ns_mov_b64 exec, 0xff")
        s = f"buffer_load_dwordx2 v[2:3], v145, {WS}, s{sT0} offen sc1"
        t = A.vmem(s) if tracked else e(s)
        e("s_mov_b64 exec, -1")
        return t
    def flag_check(lbl):
        e(f"v_cmp_ne_u32 vcc, s{sN0}, v2\nv_cmp_ne_u32 s[100:101], s{sN1}, v3\ns_or_b64 vcc, vcc, s[100:101]\ns_and_b32 s{sT0}, vcc_lo, 0xff\ns_cbranch_scc0 {lbl}")
    def flag_wait(tok, base, name):
        A.wait(vm=tok)
        flag_check(f"L_{name}_ok")
        e(f"s_mov_b32 s{sCNT}, {SPIN}\nL_{name}_loop:\ns_sleep 2")
        flag_load(base, tracked=False)
        e("s_waitcnt vmcnt(0)")
        flag_check(f"L_{name}_ok")
        e(f"s_sub_u32 s{sCNT}, s{sCNT}, 1\ns_cmp_lg_u32 s{sCNT}, 0\ns_cbranch_scc1 L_{name}_loop\nL_{name}_ok:")
    tfm = flag_load(WS_FLAGM)
    XV = 200
    e(f"v_lshrrev_b32 v1, 5, v0\nv_lshlrev_b32 v1, 14, v1\nv_and_b32 v20, 31, v0\nv_lshl_add_u32 v198, v20, 1, v1")
    e(f"s_lshr_b32 s{sT0}, s{sW}, 1\ns_lshl_b32 s{sT1}, s{sM2}, 1\ns_add_u32 s{sT0}, s{sT0}, s{sT1}\ns_lshl_b32 s{sT0}, s{sT0}, 15")
    e(f"s_and_b32 s{sT1}, s{sW}, 1\ns_lshl_b32 s{sT2}, s{sN2}, 1\ns_add_u32 s{sT1}, s{sT1}, s{sT2}\ns_lshl_b32 s{sT1}, s{sT1}, 6")
    e(f"s_add_u32 s{sXB}, s{sT0}, s{sT1}")
    e(f"v_lshl_add_u32 v199, v20, 1, s{sT1}")
    for v in range(16):
        if v % 4 == 0: e(f"s_add_u32 s{sT0}, s{sXB}, {v*1024}")
        xvt = A.vmem(f"buffer_load_ushort v{XV+v}, v198, {X}, s{sT0} offen offset:{(v%4)*1024}")
    dst = A.vmem("global_load_ushort v216, v199, s[32:33]")
    for v in range(16):
        e(f"v_mul_f32 v146, v{C2r}, v{ACR+v}\nv_mul_f32 v147, v{C2r}, v{ACI+v}\nv_fma_f32 v146, -v{C2i}, v{ACI+v}, v146\nv_fma_f32 v{ACI+v}, v{C2i}, v{ACR+v}, v147\nv_mov_b32 v{ACR+v}, v146")
    TAlo, TAhi = 162, 164
    CAlo, CAhi = 166, 174
    e("v_lshrrev_b32 v1, 5, v0\nv_bfe_u32 v20, v0, 2, 2\nv_lshl_add_u32 v1, v1, 2, v20\nv_lshlrev_b32 v1, 7, v1")
    e(f"v_bfe_u32 v20, v0, 3, 1\ns_and_b32 s{sT0}, s{sW}, 1\nv_xor_b32 v20, s{sT0}, v20\nv_lshl_add_u32 v1, v20, 6, v1")
    e("v_bfe_u32 v20, v0, 4, 1\nv_lshl_add_u32 v1, v20, 5, v1\nv_and_b32 v20, 3, v0\nv_lshl_add_u32 v1, v20, 3, v1")
    e(f"s_lshl_b32 s{sT1}, s{sW}, 13\nv_add_u32 v{TAlo}, s{sT1}, v1\nv_xor_b32 v{TAlo+1}, 64, v{TAlo}")
    e(f"v_add_u32 v{TAhi}, 0x10000, v{TAlo}\nv_add_u32 v{TAhi+1}, 0x10000, v{TAlo+1}")
    e(f"s_lshl_b32 s{sT0}, s{sT0}, 12\ns_add_u32 s{sT1}, s{sT1}, s{sT0}")
    for ks in range(4):
        e(f"v_add_u32 v{CAlo+ks}, s{sT1}, v{12+ks}\nv_xor_b32 v{CAlo+4+ks}, 0x1000, v{CAlo+ks}")
    for k in range(8): e(f"v_add_u32 v{CAhi+k}, 0x10000, v{CAlo+k}")
    e(f"s_mov_b32 s99, s{sH0}")
    e(f"s_lshr_b32 s{sT0}, s{sW}, 1\ns_lshl_b32 s{sT1}, s{sM2}, 1\ns_add_u32 s{sT0}, s{sT0}, s{sT1}\ns_mul_i32 s{sH0}, s{sT0}, {RT_PITCH}\ns_xor_b32 s{sT0}, s{sT0}, 1\ns_mul_i32 s{sH1}, s{sT0}, {RT_PITCH}")
    HB = 64
    WF = [182, 190]
    ACC2 = 64
    htok = {}
    sU0, sU1 = 12, 13
    def h_loads(n):
        j, ks = n >> 2, n & 3
        if ks == 0:
            if j < 7:
                mlp_unit(j, sU1)
                e(f"s_lshl_b32 s{sU1}, s{sU1}, 12")
            else:
                e(f"s_lshl_b32 s{sU1}, s{sW}, 14\ns_add_u32 s{sU1}, s{sU1}, {(28 + j - 7) * 4096}")
            e(f"s_add_u32 s{sU0}, s{sU1}, s{sH0}\ns_add_u32 s{sU1}, s{sU1}, s{sH1}")
        r = HB + 8 * (n % HD)
        A.vmem(f"buffer_load_dwordx4 a[{r}:{r+3}], v31, {WS}, s{sU0} offen offset:{ks*1024} sc1")
        htok[n] = A.vmem(f"buffer_load_dwordx4 a[{r+4}:{r+7}], v31, {WS}, s{sU1} offen offset:{ks*1024} sc1")
    wft = {}
    def w_reads(n, dts):
        j, ks = n >> 2, n & 3
        pos = RING[j & 3]; hi = pos >= 65536; off = pos & 0xffff
        t = WF[n & 1] + 4 * dts
        if ks == 0 and dts == 0: A.wait(vm=ring_tok[j])
        if j < 7:
            ar = (TAhi if hi else TAlo) + dts
            A.ds(f"ds_read_b64_tr_b16 v[{t}:{t+1}], v{ar} offset:{off + 16*ks*128}")
            wft[(n, dts)] = A.ds(f"ds_read_b64_tr_b16 v[{t+2}:{t+3}], v{ar} offset:{off + (16*ks+8)*128}")
        else:
            ar = (CAhi if hi else CAlo) + 4 * dts + ks
            wft[(n, dts)] = A.ds(f"ds_read_b128 v[{t}:{t+3}], v{ar} offset:{off}")
    flag_wait(tfm, WS_FLAGM, "fm")
    stamp("flagM seen")
    for n in range(HD): h_loads(n)
    w_reads(0, 0); w_reads(0, 1)
    agt = None
    hs_tok = None
    for n in range(44):
        j, ks = n >> 2, n & 3
        if n == AG_STEP - 2:
            e("v_and_b32 v1, 31, v0\nv_lshlrev_b32 v1, 4, v1\nv_lshrrev_b32 v217, 5, v0\nv_lshl_add_u32 v217, v217, 12, v1")
            for k in range(8): agt = A.vmem(f"buffer_load_dwordx4 v[{220+4*k}:{223+4*k}], v217, {AGG}, 0 offen offset:{k*512} sc1")
        if n == AG_STEP:
            stamp("agg poll")
            e(f"v_lshrrev_b32 v1, 5, v0\nv_lshlrev_b32 v1, 3, v1\nv_sub_u32 v1, s{sRB}, v1\nv_med3_i32 v218, v1, 0, 8")
            def agg_check(lbl):
                e("v_mov_b32 v1, 0")
                for k in range(8):
                    e(f"v_xor_b32 v2, s{sN0}, v{221+4*k}\nv_xor_b32 v3, s{sN1}, v{223+4*k}\nv_or_b32 v2, v2, v3\nv_cmp_eq_u32 vcc, 0, v2\nv_addc_co_u32 v1, vcc, 0, v1, vcc")
                e(f"v_cmp_ne_u32 vcc, v1, v218\ns_cbranch_vccz {lbl}")
            A.wait(vm=agt)
            agg_check("L_ag_ok")
            e(f"s_mov_b32 s{sCNT}, {SPIN}\nL_ag_loop:\ns_sleep 2")
            for k in range(8): e(f"buffer_load_dwordx4 v[{220+4*k}:{223+4*k}], v217, {AGG}, 0 offen offset:{k*512} sc1")
            e("s_waitcnt vmcnt(0)")
            agg_check("L_ag_ok")
            e(f"s_sub_u32 s{sCNT}, s{sCNT}, 1\ns_cmp_lg_u32 s{sCNT}, 0\ns_cbranch_scc1 L_ag_loop\nL_ag_ok:")
            cur = (220 + 28, 222 + 28)
            for k in range(6, -1, -1):
                d = [(146, 147), (148, 149)][k & 1]
                cfma(d[0], d[1], L128r, L128i, cur[0], cur[1], 220 + 4 * k, 222 + 4 * k); cur = d
            e("v_mov_b32 v148, v146\nv_mov_b32 v149, v147\nv_permlane32_swap_b32 v146, v148\nv_permlane32_swap_b32 v147, v149")
            cfma(150, 151, L1Kr, L1Ki, 148, 149, 146, 147)
            cfma(146, 147, PWr, PWi, 150, 151, LOCr, LOCi)
            cmul(150, 151, C2r, C2i, 146, 147)
            cur = (150, 151)
            for v in range(16):
                cfma_d = (ACR + v, ACI + v)
                e(f"v_fmac_f32 v{ACR+v}, v{Lr}, v{cur[0]}\nv_fmac_f32 v{ACI+v}, v{Lr}, v{cur[1]}\nv_fma_f32 v{ACR+v}, -v{Li}, v{cur[1]}, v{ACR+v}\nv_fmac_f32 v{ACI+v}, v{Li}, v{cur[0]}")
                cur = cfma_d
            e(f"s_mul_i32 s{sT0}, s{sW}, 4608\ns_add_u32 s{sT0}, s{sT0}, {L_TRP}")
            e(f"v_and_b32 v1, 31, v0\nv_mul_u32_u24 v1, 72, v1\nv_lshrrev_b32 v2, 5, v0\nv_lshl_add_u32 v1, v2, 3, v1\nv_add_u32 v1, s{sT0}, v1")
            for q in range(4):
                e(f"v_cvt_pk_bf16_f32 v{146+2*q}, v{ACR+4*q}, v{ACR+4*q+1}\nv_cvt_pk_bf16_f32 v{147+2*q}, v{ACR+4*q+2}, v{ACR+4*q+3}")
                A.ds(f"ds_write_b64 v1, v[{146+2*q}:{147+2*q}] offset:{16*q}")
            for q in range(4):
                e(f"v_cvt_pk_bf16_f32 v{154+2*q}, -v{ACI+4*q}, -v{ACI+4*q+1}\nv_cvt_pk_bf16_f32 v{155+2*q}, -v{ACI+4*q+2}, -v{ACI+4*q+3}")
                A.ds(f"ds_write_b64 v1, v[{154+2*q}:{155+2*q}] offset:{2304+16*q}")
            e("v_lshrrev_b32 v2, 5, v0\nv_bfe_u32 v3, v0, 2, 2\nv_lshl_add_u32 v2, v2, 3, v3\nv_mul_u32_u24 v2, 72, v2\nv_bfe_u32 v3, v0, 4, 1\nv_lshl_add_u32 v2, v3, 5, v2\nv_and_b32 v3, 3, v0\nv_lshl_add_u32 v2, v3, 3, v2")
            e(f"v_add_u32 v2, s{sT0}, v2")
            A.wait(lg=A.lg)
            trt = []
            for part in range(2):
                for kk in range(2):
                    r = 220 + 8 * part + 4 * kk
                    A.ds(f"ds_read_b64_tr_b16 v[{r}:{r+1}], v2 offset:{part*2304 + 16*kk*72}")
                    trt.append(A.ds(f"ds_read_b64_tr_b16 v[{r+2}:{r+3}], v2 offset:{part*2304 + (16*kk+4)*72}"))
            e(f"s_lshr_b32 s{sT0}, s{sCB}, 1\ns_lshl_b32 s{sT0}, s{sT0}, 13\ns_and_b32 s{sT1}, s{sCB}, 1\ns_lshl_b32 s{sT1}, s{sT1}, 11\ns_add_u32 s{sT0}, s{sT0}, s{sT1}\ns_add_u32 s{sT0}, s{sT0}, s99\ns_add_u32 s{sT0}, s{sT0}, {28*4096}\ns_add_u32 s{sT1}, s{sT0}, 4096")
            for part in range(2):
                for kk in range(2):
                    r = 220 + 8 * part + 4 * kk
                    A.wait(lg=trt[2 * part + kk])
                    hs_tok = A.vmem(f"buffer_store_dwordx4 v[{r}:{r+3}], v31, {WS}, s{sT1 if part else sT0} offen offset:{kk*1024} sc1")
            stamp("hssm stores issued")
        if n == AG_STEP + 3:
            A.wait(vm=hs_tok)
            flag_store(WS_FLAGS)
        if n == FS_STEP - 2:
            tfs = flag_load(WS_FLAGS)
            e(f"s_lshl_b32 s{sT0}, s{sM2}, 10\ns_add_u32 s{sT0}, s{sT0}, {WS_GZ:#x}")
            gzt = A.vmem(f"buffer_load_dwordx4 v[220:223], v31, {WS}, s{sT0} offen sc1")
        if n == FS_STEP:
            flag_wait(tfs, WS_FLAGS, "fs")
            stamp("flagS seen")
            for k in range(28, n + HD): h_loads(k)
            def gz_check(lbl):
                e(f"v_cmp_ne_u32 vcc, s{sN0}, v221\nv_cmp_ne_u32 s[100:101], s{sN1}, v223\ns_or_b64 vcc, vcc, s[100:101]\ns_cbranch_scc0 {lbl}")
            A.wait(vm=gzt)
            gz_check("L_gz_ok")
            e(f"s_mov_b32 s{sCNT}, {SPIN}\ns_lshl_b32 s{sT0}, s{sM2}, 10\ns_add_u32 s{sT0}, s{sT0}, {WS_GZ:#x}\nL_gz_loop:\ns_sleep 2")
            e(f"buffer_load_dwordx4 v[220:223], v31, {WS}, s{sT0} offen sc1\ns_waitcnt vmcnt(0)")
            gz_check("L_gz_ok")
            e(f"s_sub_u32 s{sCNT}, s{sCNT}, 1\ns_cmp_lg_u32 s{sCNT}, 0\ns_cbranch_scc1 L_gz_loop\nL_gz_ok:")
            e("v_cvt_pk_bf16_f32 v220, v220, v220\nv_lshlrev_b32 v220, 16, v220")
            e("v_mul_f32 v220, 0xbfb8aa3b, v220\nv_exp_f32 v220, v220\nv_add_f32 v220, 1.0, v220\nv_rcp_f32 v220, v220")
            e("v_cvt_pk_bf16_f32 v220, v220, v220\nv_lshlrev_b32 v220, 16, v220")
            e("v_sub_f32 v221, 1.0, v220\nv_cvt_pk_bf16_f32 v221, v221, v221\nv_lshlrev_b32 v221, 16, v221")
            e("v_max_f32 v220, 0x21800000, v220\nv_rcp_f32 v222, v220\nv_mul_f32 v221, v221, v222")
            e(f"s_lshl_b32 s{sT0}, s{sW}, 9\ns_add_u32 s{sT0}, s{sT0}, {L_RG}\nv_lshl_add_u32 v1, v0, 2, s{sT0}")
            A.ds("ds_write_b32 v1, v221")
            A.ds("ds_write_b32 v1, v220 offset:256")
            e(f"s_lshr_b32 s{sT1}, s{sW}, 1\ns_lshl_b32 s{sT1}, s{sT1}, 7\ns_add_u32 s{sT0}, s{sT0}, s{sT1}\nv_lshrrev_b32 v1, 5, v0\nv_lshl_add_u32 v1, v1, 6, s{sT0}\nv_xor_b32 v2, 128, v1")
            A.wait(lg=A.lg)
            for q in range(4): A.ds(f"ds_read_b128 v[{128+4*q}:{131+4*q}], v1 offset:{16*q}")
            for q in range(4): A.ds(f"ds_read_b128 v[{144+4*q}:{147+4*q}], v2 offset:{16*q}")
            for q in range(4): rgt = A.ds(f"ds_read_b128 v[{220+4*q}:{223+4*q}], v1 offset:{256+16*q}")
            A.wait(vm=dst)
            e("v_lshlrev_b32 v216, 16, v216")
            for v in range(0, 16, 2):
                e(f"v_lshlrev_b32 v{XV+v}, 16, v{XV+v}\nv_lshlrev_b32 v{XV+v+1}, 16, v{XV+v+1}\nv_mul_f32 v{XV+v}, v{XV+v}, v216\nv_mul_f32 v{XV+v+1}, v{XV+v+1}, v216")
                e(f"v_cvt_pk_bf16_f32 v{XV+v+1}, v{XV+v}, v{XV+v+1}\nv_lshlrev_b32 v{XV+v}, 16, v{XV+v+1}\nv_and_b32 v{XV+v+1}, 0xffff0000, v{XV+v+1}")
        if n == 28:
            A.wait(lg=rgt)
            for b in range(4):
                for v in range(16):
                    e(f"v_mul_f32 v{ACC2+16*b+v}, v{ACC2+16*b+v}, v{(128 if b < 2 else 144)+v}")
        A.wait(vm=htok[n])
        for b in range(4):
            bt, bd = b >> 1, b & 1
            if bt == 0: A.wait(lg=wft[(n, bd)])
            h = HB + 8 * (n % HD) + 4 * bt; t = WF[n & 1] + 4 * bd; acc = ACC2 + 16 * b
            e(f"v_mfma_f32_32x32x16_bf16 v[{acc}:{acc+15}], a[{h}:{h+3}], v[{t}:{t+3}], " + ("0" if n == 0 else f"v[{acc}:{acc+15}]"))
            if n < 43 and b in (0, 1): w_reads(n + 1, b)
            if b == 1 and ks == 3 and j + 4 <= 10:
                issue_ring(j + 4)
        k = n + HD
        if k < 44 and (k < 28 or n >= FS_STEP): h_loads(k)
    stamp("stage2 done")
    e(f"s_lshl_b32 s{sT0}, s{sW}, 13\nv_add_u32 v1, s{sT0}, v31\nv_add_u32 v2, 0x10000, v1")
    for b in (1, 2, 3):
        for q in range(4):
            r = ACC2 + 16 * b + 4 * q
            if b < 3: A.ds(f"ds_write_b128 v1, v[{r}:{r+3}] offset:{32768 + (b-1)*4096 + q*1024}")
            else: A.ds(f"ds_write_b128 v2, v[{r}:{r+3}] offset:{q*1024}")
    e("v_xor_b32 v3, 0x2000, v1\nv_xor_b32 v4, 0x4000, v1\nv_xor_b32 v5, 0x6000, v2")
    e(f"v_lshrrev_b32 v6, 5, v0\nv_lshlrev_b32 v6, 15, v6\nv_and_b32 v7, 31, v0\nv_lshl_add_u32 v6, v7, 2, v6\ns_lshl_b32 s{sXB}, s{sXB}, 1")
    A.wait(lg=A.lg)
    e("s_barrier")
    rt = {}
    for q in range(4):
        for b in (1, 2, 3):
            r = 128 + 16 * (b - 1) + 4 * q
            off = 32768 + (b - 1) * 4096 + q * 1024 if b < 3 else q * 1024
            rt[(q, b)] = A.ds(f"ds_read_b128 v[{r}:{r+3}], v{2+b} offset:{off}")
    for q in range(4):
        for i in range(4): e(f"v_add_f32 v{ACC2+4*q+i}, v{ACC2+4*q+i}, v{XV+4*q+i}")
        A.wait(lg=rt[(q, 3)])
        for i in range(4):
            v = 4 * q + i
            e(f"v_add_f32 v{128+v}, v{128+v}, v{144+v}\nv_add_f32 v{ACC2+v}, v{ACC2+v}, v{160+v}\nv_add_f32 v{ACC2+v}, v{ACC2+v}, v{128+v}\nv_mul_f32 v{ACC2+v}, v{ACC2+v}, v{220+v}")
            if v % 2 == 0 and v > 0: e(f"s_add_u32 s{sXB}, s{sXB}, 4096")
            A.L.append(f"buffer_store_dword v{ACC2+v}, v6, {OUT}, s{sXB} offen offset:{(v%2)*2048}")
    if stamps:
        e("s_waitcnt vmcnt(0)")
        stamp("end")
        e("s_memrealtime s[0:1]\ns_waitcnt lgkmcnt(0)")
        e(f"s_lshl_b32 s{sT0}, s2, 2\ns_add_u32 s{sT0}, s{sT0}, s{sW}\ns_lshl_b32 s{sT0}, s{sT0}, 6\ns_add_u32 s{sT0}, s{sT0}, {WS_STAMP:#x}\nv_mov_b32 v1, 0")
        for i in range(nstamp[0]):
            e(f"s_sub_u32 s{sT1}, s{stamp_regs[i]}, s14\nv_mov_b32 v2, s{sT1}\nbuffer_store_dword v2, v1, {WS}, s{sT0} offen offset:{4*i}")
        e(f"v_mov_b32 v2, s0\nbuffer_store_dword v2, v1, {WS}, s{sT0} offen offset:60")
    e("L_end:\ns_endpgm")
    body = A.text()
    hdr = HEADER + f"; @launch grid=(256,1,1) block=(256,1,1) lds={LDS_BYTES}\n"
    hdr += '.amdgcn_target "amdgcn-amd-amdhsa--gfx950"\n.text\n' + f".globl {KNAME}\n.p2align 8\n.type {KNAME},@function\n"
    tail = f""".section .rodata,"a"
.p2align 6
.amdhsa_kernel {KNAME}
  .amdhsa_next_free_vgpr 512
  .amdhsa_next_free_sgpr 102
  .amdhsa_accum_offset 256
  .amdhsa_group_segment_fixed_size 0
  .amdhsa_kernarg_size 128
  .amdhsa_user_sgpr_count 2
  .amdhsa_user_sgpr_kernarg_segment_ptr 1
  .amdhsa_system_sgpr_workgroup_id_x 1
.end_amdhsa_kernel
"""
    return hdr + body + tail

if __name__ == "__main__":
    out = sys.argv[1] if len(sys.argv) > 1 else "k.s"
    kw = {}
    for a in sys.argv[2:]:
        k, v = a.split("="); kw[k] = int(v)
    open(out, "w").write(gen(**kw))
```

```python
import re

TRANS = ("v_exp_f32", "v_log_f32", "v_rcp_f32", "v_rsq_f32", "v_sqrt_f32", "v_sin_f32", "v_cos_f32")

def _regs(tok):
    tok = tok.strip()
    tok = tok.lstrip("-")
    m = re.fullmatch(r"abs\((.*)\)", tok)
    if m: tok = m.group(1)
    tok = tok.strip("|")
    m = re.fullmatch(r"([vas])(\d+)", tok)
    if m: return {m.group(1) + m.group(2)}
    m = re.fullmatch(r"([vas])\[(\d+):(\d+)\]", tok)
    if m: return {m.group(1) + str(i) for i in range(int(m.group(2)), int(m.group(3)) + 1)}
    if tok in ("vcc",): return {"vcc_lo", "vcc_hi"}
    if tok in ("vcc_lo", "vcc_hi", "m0"): return {tok}
    if tok == "exec": return {"exec_lo", "exec_hi"}
    if tok in ("exec_lo", "exec_hi"): return {tok}
    return set()

class Ins:
    def __init__(self, text):
        self.text = text
        t = text.split(";")[0].strip()
        self.is_label = t.endswith(":")
        self.op = t.split()[0] if t else ""
        rest = t[len(self.op):].strip()
        ops = []; cur = ""; depth = 0
        for ch in rest:
            if ch in "[(": depth += 1
            if ch in "])": depth -= 1
            if ch == "," and depth == 0:
                ops.append(cur.strip()); cur = ""
            else: cur += ch
        if cur.strip(): ops.append(cur.strip())
        mods = ""
        if ops:
            parts = ops[-1].split()
            ops[-1] = parts[0]; mods = " ".join(parts[1:])
        self.ops = ops; self.mods = mods
        op = self.op
        self.w = set(); self.r = set()
        self.mfma = op.startswith("v_mfma")
        self.valu = op.startswith("v_") and not self.mfma
        self.salu = op.startswith("s_") and not op.startswith(("s_load", "s_waitcnt", "s_nop", "s_barrier", "s_branch", "s_cbranch", "s_endpgm", "s_sleep", "s_memtime", "s_memrealtime", "s_setprio"))
        self.vmem = op.startswith(("buffer_", "global_"))
        self.ds = op.startswith("ds_")
        self.lds_dma = self.vmem and (" lds" in (" " + mods) or "load_lds" in op)
        self.store = self.vmem and ("store" in op or "atomic" in op)
        self.C = set(); self.AB = set(); self.data = set()
        R = [_regs(o) for o in ops]
        if self.is_label or not op: return
        if self.mfma:
            self.w = R[0]; self.AB = R[1] | R[2]; self.C = R[3]; self.r = self.AB | self.C
        elif self.valu:
            if op.startswith("v_cmp"):
                self.w = R[0]; self.r = set().union(*R[1:])
            elif op.startswith(("v_permlane32_swap", "v_permlane16_swap", "v_swap")):
                self.w = R[0] | R[1]; self.r = R[0] | R[1]
            elif op.startswith(("v_add_co", "v_sub_co", "v_addc_co", "v_subb_co", "v_subrev_co")):
                self.w = R[0] | R[1]; self.r = set().union(*R[2:])
            else:
                self.w = R[0]; self.r = set().union(*R[1:]) if len(R) > 1 else set()
                if op.startswith(("v_fmac", "v_dot2c", "v_mac", "v_writelane")): self.r |= R[0]
                if op.startswith("v_cndmask") and len(R) == 3: self.r |= {"vcc_lo", "vcc_hi"}
        elif self.vmem:
            if self.lds_dma:
                self.r = set().union(*R) | {"m0"}
            elif self.store:
                self.r = set().union(*R)
                self.data = R[0] if op.startswith("buffer_") else R[1]
            elif op in ("buffer_wbl2", "buffer_inv"):
                pass
            else:
                self.w = R[0]; self.r = set().union(*R[1:])
        elif self.ds:
            if op.startswith(("ds_read", "ds_bpermute", "ds_permute", "ds_swizzle")):
                self.w = R[0]; self.r = set().union(*R[1:])
            else:
                self.r = set().union(*R)
        elif op.startswith("s_"):
            if op.startswith(("s_cmp", "s_cbranch", "s_branch", "s_waitcnt", "s_nop", "s_barrier", "s_endpgm", "s_sleep", "s_setprio", "s_bitcmp")):
                self.r = set().union(*R) if R else set()
            else:
                self.w = R[0] if R else set(); self.r = set().union(*R[1:]) if len(R) > 1 else set()
    def states(self):
        if self.is_label or not self.op: return 0
        if self.op == "s_nop": return int(self.ops[0], 0) + 1
        return 1

def need(p, c):
    n = 0
    sg = lambda S: {x for x in S if x[0] == "s" or x.startswith("vcc")}
    vg = lambda S: {x for x in S if (x[0] in "va") and not x.startswith("vcc")}
    if p.valu:
        if c.mfma and (vg(p.w) & c.r): n = max(n, 2)
        if c.vmem and (sg(p.w) & c.r): n = max(n, 5)
        if c.valu and (sg(p.w) & c.r): n = max(n, 4 if c.op.startswith(("v_readlane", "v_writelane")) else 2)
        if c.salu and (sg(p.w) & c.r): n = max(n, 1)
        if c.op.startswith("s_cbranch_vcc") and (p.w & {"vcc_lo", "vcc_hi"}): n = max(n, 2)
        if c.op.startswith(("v_readlane", "v_readfirstlane")) and (vg(p.w) & c.r): n = max(n, 1)
        if c.op.startswith("v_permlane") and (vg(p.w) & c.r): n = max(n, 2)
        if c.valu and ("dpp" in c.op or "row_" in c.mods or "quad_perm" in c.mods) and (vg(p.w) & c.r): n = max(n, 2)
        if p.op.startswith(TRANS) and c.valu and (p.w & c.r): n = max(n, 1)
        if p.op.startswith(TRANS) and (c.ds or c.vmem) and (p.w & c.r): n = max(n, 1)
        if p.op.startswith("v_dot2") and (p.w & (c.r | c.w)):
            if not (c.op == p.op and not (p.w & set().union(*[_regs(o) for o in c.ops[1:3]]))): n = max(n, 3)
        if ("op_sel" in p.mods or "sdwa" in p.op or "dst_sel" in p.mods) and c.valu and (p.w & (c.r | c.w)): n = max(n, 1)
    if p.mfma:
        passes = 8 if "32x32x16" in p.op else (2 if "4x4x4" in p.op else 4)
        big = {2: 5, 4: 8, 8: 12}[passes]; mid = {2: 4, 4: 6, 8: 10}[passes]; war = {2: 1, 4: 3, 8: 7}[passes]
        if c.mfma:
            if p.w & c.AB: n = max(n, big)
            if p.w & c.C:
                if not (p.w == c.C and p.op == c.op): n = max(n, mid)
                elif passes == 2: n = max(n, 2)
            if (p.w & c.w) and not (p.w & c.C): n = max(n, mid)
        else:
            if (c.valu or c.vmem or c.ds) and (p.w & (c.r | c.w)): n = max(n, big)
            if c.valu and (p.C & c.w): n = max(n, war)
    if p.salu and "m0" in p.w and c.lds_dma: n = max(n, 1)
    if p.store and len(p.data) >= 3 and (p.data & c.w): n = max(n, 2)
    return n

def pad(lines):
    out = []
    for text in lines:
        for t in text.split("\n"):
            if not t.strip(): continue
            c = Ins(t)
            if c.op.startswith(".") or (t.strip().startswith(";")):
                out.append(c); continue
            if not c.is_label:
                req = 0; dist = 0
                for p in reversed(out):
                    if p.op.startswith(".") : continue
                    if dist >= 13: break
                    if p.op and not p.is_label:
                        k = need(p, c) - dist
                        if k > req: req = k
                    dist += p.states()
                if req > 0:
                    out.append(Ins(f"s_nop {req - 1}"))
            out.append(c)
    return [i.text for i in out]

class Asm:
    def __init__(self):
        self.L = []; self.vm = 0; self.lg = 0
        self.vm_done = 0; self.lg_done = 0
    def e(self, s):
        self.L.append(s)
    def vmem(self, s):
        self.L.append(s); self.vm += 1
        assert self.vm - self.vm_done <= 63, "too many outstanding vmem ops"
        return self.vm
    def ds(self, s):
        self.L.append(s); self.lg += 1
        return self.lg
    def wait(self, vm=None, lg=None):
        parts = []
        if vm is not None and vm > self.vm_done:
            n = self.vm - vm
            assert n <= 63
            parts.append(f"vmcnt({n})"); self.vm_done = vm
        if lg is not None and lg > self.lg_done:
            n = min(self.lg - lg, 15)
            parts.append(f"lgkmcnt({n})"); self.lg_done = self.lg - n
        if parts: self.L.append("s_waitcnt " + " ".join(parts))
    def wait_all_lg(self): self.wait(lg=self.lg)
    def wait_all_vm(self): self.wait(vm=self.vm)
    def text(self):
        return "\n".join(pad(self.L)) + "\n"


class Sched(Asm):
    def __init__(self, cadence=60, burst=4):
        super().__init__()
        self.t = 0; self.mf = 0
        self.cad = cadence; self.burst = burst
        self.next_bg = 0
        self.q = [[], []]
        self.off = 0; self.inbg = False
        self.tok = {}; self.partial = None
    def push_front(self, name, fns):
        k = 0
        while k < len(self.q[1]) and self.q[1][k][0] == self.partial: k += 1
        self.q[1][k:k] = [(name, f, i == len(fns) - 1) for i, f in enumerate(fns)]
    def force_q(self, qi, n):
        for _ in range(n):
            if self.q[qi]: self._emit_one(qi)
    def _cost(self, s):
        for line in s.split("\n"):
            op = line.strip().split(" ")[0]
            if not op or op.endswith(":") or op.startswith(";"): continue
            if op.startswith("v_mfma"):
                self.t = max(self.t, self.mf); self.mf = self.t + (8 if "4x4x4" in op else 32); self.t += 8
            elif op.startswith(TRANS): self.t += 8
            elif op.startswith("v_"): self.t += 5
            else: self.t += 4
    def e(self, s):
        super().e(s); self._cost(s); self.sp()
    def ds(self, s):
        t = super().ds(s); self._cost(s); self.sp(); return t
    def vmem(self, s, heavy=True):
        t = super().vmem(s); self._cost(s)
        if heavy and not self.inbg:
            self.next_bg = max(self.next_bg, self.t - self.burst * self.cad) + self.cad
        return t
    def push(self, name, fns, prio=1):
        for i, f in enumerate(fns): self.q[prio].append((name, f, i == len(fns) - 1))
    def _emit_one(self, qi=None):
        if qi is None: qi = 0 if self.q[0] else 1
        name, f, last = self.q[qi].pop(0)
        self.inbg = True; t = f(); self.inbg = False
        if last: self.tok[name] = t
        if qi == 1: self.partial = None if last else name
        self.next_bg = max(self.next_bg, self.t - self.burst * self.cad) + self.cad
    def sp(self):
        if self.off or self.inbg: return
        while (self.q[0] or self.q[1]) and self.t >= self.next_bg: self._emit_one()
    def force(self, n):
        for _ in range(n):
            if self.q[0] or self.q[1]: self._emit_one()
    def token(self, name):
        while name not in self.tok:
            qi = 0 if any(x[0] == name for x in self.q[0]) else 1
            assert any(x[0] == name for x in self.q[qi]), name
            self._emit_one(qi)
        return self.tok[name]
```

```python
import sys
from asmlib import Sched

KNAME = "gated_mix__ssm_conv_s5__dense_activation_relu__prompt_kernel"
HEADER = open("gated_mix__ssm_conv_s5__dense_activation_relu__prompt.s.ref").read().split("; Override")[0]

RT_PITCH = 44 * 4096
WS_F0, WS_F1, WS_FS = 0xB00000, 0xB20000, 0xB40000
WS_AGG, WS_GZ, WS_STAMP, WS_SIZE = 0xB60000, 0xB80000, 0xB90000, 0xBA0000
OOB = 0x40000000
L_MISC = 131072
L_EBUF = L_MISC
L_TRP  = L_MISC + 4096
L_RG   = L_MISC + 4096 + 18432
LDS_BYTES = L_RG + 2048
PA, PB, PC, PD = 65536, 65536 + 8192, 0, 8192
POS = {0: PA, 1: PB, 2: PA, 3: PB, 4: PA, 5: PC, 6: PD, 7: PB, 8: PA, 9: PC, 10: PD}
KSTR = 64 * 3584

def gen(stamps=0, SPIN=20000, CAD=64, BURST=3, HD=12, LB=3, DU=6, ROT=1,
        W0=27, W1S=36, W2S=53, F0S=30, F0L=58, AGL=60, F1S=9, FST=6, FSS=18, TX=1, H1=10, PF=2, EB=42, CADW=80, NF3=4):
    A = Sched(CAD, BURST); e = A.e
    sW, sRB, sCB, sM2, sN2, sKB, sXCD, sN0, sN1 = 3, 4, 5, 6, 7, 8, 9, 10, 11
    NN = "s[10:11]"
    X, W1, BRE, BIM, W2, CRE, CIM, WS, OUT, AGG = [f"s[{b}:{b+3}]" for b in range(48, 88, 4)]
    sXB, sWB, sM0, sKC, sT0, sT1, sT2, sT3, sH0, sH1, sCNT, sP = 88, 89, 90, 91, 92, 93, 94, 95, 96, 97, 98, 99
    sB0, sB1, sU0, sU1 = 12, 13, 42, 43
    sUN = [34, 35, 36, 37, 38, 39, 47]
    sH0T = 46
    sUM, sUB, sUS = 20, 21, 30
    U1S = "s[24:27]"
    stamp_regs = [0, 16, 18, 22, 28, 40, 44]
    used = []; stamp_names = []
    def stamp(name, sset=1):
        if stamps == sset or (stamps and name == "end"):
            r = 32 if name == "end" else stamp_regs[len(used)]
            used.append(r); stamp_names.append(name)
            A.L.append(f"s_memtime s[{r}:{r+1}]")
    def srd(base, ptr, size):
        e(f"s_mov_b32 s{base}, s{ptr}\ns_mov_b32 s{base+1}, s{ptr+1}\ns_mov_b32 s{base+2}, {size:#x}\ns_mov_b32 s{base+3}, 0x20000")
    class NoBG:
        def __enter__(s): A.off += 1
        def __exit__(s, *a): A.off -= 1
    nobg = NoBG()
    F = []
    def fill(k):
        while k > 0 and F:
            p = F.pop(0)
            if callable(p): p()
            else: e(p)
            k -= 1

    e(f"{KNAME}:")
    e("s_cmp_ge_u32 s2, 256\ns_cbranch_scc1 L_end")
    e("s_load_dwordx16 s[16:31], s[0:1], 0")
    e("s_load_dwordx16 s[32:47], s[0:1], 64")
    e("s_memrealtime s[100:101]")
    if stamps: e("s_memtime s[14:15]")
    e("v_lshrrev_b32 v1, 6, v0")
    e("v_and_b32 v0, 63, v0")
    e(f"v_readfirstlane_b32 s{sW}, v1")
    e(f"s_and_b32 s{sXCD}, s2, 7\ns_lshr_b32 s{sT1}, s2, 3")
    e(f"s_and_b32 s{sN2}, s{sT1}, 7\ns_lshr_b32 s{sT2}, s{sT1}, 3")
    e(f"s_and_b32 s{sRB}, s{sXCD}, 1\ns_lshl_b32 s{sRB}, s{sRB}, 3\ns_add_u32 s{sRB}, s{sRB}, s{sN2}")
    e(f"s_lshr_b32 s{sT0}, s{sXCD}, 1\ns_lshl_b32 s{sCB}, s{sT0}, 2\ns_add_u32 s{sCB}, s{sCB}, s{sT2}")
    e(f"s_lshl_b32 s{sM2}, s{sXCD}, 2\ns_add_u32 s{sM2}, s{sM2}, s{sT2}")
    e(f"s_mul_i32 s{sT0}, s{sT0}, 7\ns_lshl_b32 s{sH1}, s{sT2}, 1\ns_add_u32 s{sH1}, s{sH1}, s{sT0}")
    e(f"s_lshl_b32 s{sXB}, s{sRB}, 2\ns_add_u32 s{sXB}, s{sXB}, s{sW}\ns_lshl_b32 s{sXB}, s{sXB}, 15")
    e(f"s_lshl_b32 s{sM0}, s{sW}, 14\ns_lshl_b32 s{sP}, s{sW}, 11\ns_lshl_b32 s{sT0}, s{sH1}, 7\ns_mul_i32 s{sWB}, s{sW}, {16*3584}\ns_add_u32 s{sWB}, s{sWB}, s{sT0}")
    e("v_lshrrev_b32 v1, 4, v0\nv_and_b32 v12, 7, v0\nv_xor_b32 v2, v12, v1\nv_lshlrev_b32 v2, 4, v2")
    e("v_lshrrev_b32 v3, 5, v0\nv_lshlrev_b32 v3, 14, v3")
    e("v_bfe_u32 v4, v0, 3, 2\nv_lshl_add_u32 v3, v4, 10, v3")
    e("v_add_u32 v4, v3, v2\nv_xor_b32 v8, 64, v2\nv_add_u32 v5, v3, v8\nv_add_u32 v5, 3072, v5")
    e("v_add_u32 v6, 6144, v4\nv_add_u32 v7, 6144, v5")
    e("v_lshrrev_b32 v30, 3, v0\nv_mul_u32_u24 v9, 3584, v30\nv_and_b32 v1, 1, v1\nv_lshlrev_b32 v1, 2, v1\nv_xor_b32 v12, v12, v1\nv_lshl_add_u32 v9, v12, 4, v9")
    e(f"v_add_u32 v10, {8*3584-1024}, v9")
    e(f"s_mov_b32 s{sKC}, " + (f"s{sXCD}" if ROT else "0") + f"\ns_mov_b32 s50, {2048*1024:#x}\ns_mov_b32 s51, 0x20000\ns_mov_b32 s54, {512*3584:#x}\ns_mov_b32 s55, 0x20000")
    e("s_waitcnt lgkmcnt(0)")
    e("s_mov_b32 s48, s16\ns_mov_b32 s49, s17\ns_mov_b32 s52, s36\ns_mov_b32 s53, s37")

    def dman(setup, vb, srdn, sreg, n=4):
        fns = []
        for i in range(n):
            def f(i=i):
                if i == 0: e(setup)
                return A.vmem(f"buffer_load_dwordx4 v{vb+i}, {srdn}, s{sreg} offen offset:{i*1024} lds")
            fns.append(f)
        return fns
    def adv(r): return f"\ns_add_u32 s{r}, s{r}, 1\ns_and_b32 s{r}, s{r}, 7"
    def xu_item(c):
        if ROT:
            sx = f"s_lshl_b32 s{sB0}, s{sKC}, 7\ns_add_u32 s{sB0}, s{sB0}, s{sXB}"
            su = f"s_mul_i32 s{sB1}, s{sKC}, {KSTR}\ns_add_u32 s{sB1}, s{sB1}, s{sWB}" + adv(sKC)
        else:
            sx = f"s_add_u32 s{sB0}, s{sXB}, {c*128}"; su = f"s_add_u32 s{sB1}, s{sWB}, {c*KSTR}"
        return (dman(f"s_add_u32 m0, s{sM0}, {65536 + (c&3)*4096}\n" + sx, 4, X, sB0) + dman(f"s_add_u32 m0, s{sP}, {c*8192}\n" + su, 9, W1, sB1, 2))
    def w_item(q):
        c = q & 7
        if q < 16:
            sb = (f"s_lshl_b32 s{sB0}, s{sKB}, 7\ns_add_u32 s{sB0}, s{sB0}, s{sUB}" + adv(sKB)) if ROT else f"s_add_u32 s{sB0}, s{sUB}, {c*128}"
            return dman(f"s_add_u32 m0, s{sUM}, {c*8192}\n" + sb, 8, BRE, sB0, 1) + dman(f"s_add_u32 m0, s{sUM}, {c*8192+4096}\ns_nop 0", 8, BIM, sB0, 1)
        pre = ""
        if q == 16:
            pre = f"s_lshl_b32 s{sUM}, s{sUM}, 1\ns_lshl_b32 s{sB0}, s{sW}, 5\ns_cmp_eq_u32 s{sUS}, 128\ns_cselect_b32 s{sUB}, s{sB0}, s{sWB}\n"
        if ROT: su = f"s_mul_i32 s{sB0}, s{sKB}, s{sUS}\ns_add_u32 s{sB0}, s{sB0}, s{sUB}" + adv(sKB)
        else: su = f"s_mov_b32 s{sB0}, s{sUB}\ns_add_u32 s{sUB}, s{sUB}, s{sUS}"
        return dman(pre + f"s_add_u32 m0, s{sUM}, {c*8192}\n" + su, 11, U1S, sB0, 2)
    def ring_item(j):
        pos = POS[j]
        pre = ""
        if j == 0:
            pre = ("v_lshrrev_b32 v7, 3, v0\nv_lshlrev_b32 v7, 10, v7\nv_bfe_u32 v6, v0, 4, 1\nv_lshlrev_b32 v6, 2, v6\nv_and_b32 v5, 7, v0\nv_xor_b32 v6, v6, v5\nv_lshl_add_u32 v4, v6, 4, v7\n"
                   "v_add_u32 v5, 7168, v4\nv_add_u32 v6, 14336, v4\nv_add_u32 v7, 21504, v4\n")
        if j == 7:
            pre = ("v_lshrrev_b32 v11, 3, v0\nv_lshlrev_b32 v11, 10, v11\nv_lshrrev_b32 v10, 4, v0\nv_and_b32 v9, 7, v0\nv_xor_b32 v10, v10, v9\nv_lshl_add_u32 v8, v10, 4, v11\n"
                   "v_xor_b32 v9, 64, v8\nv_add_u32 v9, 7168, v9\nv_add_u32 v10, 14336, v8\nv_add_u32 v11, 14336, v9\n")
        if j < 7:
            s0 = f"s_lshl_b32 s{sB0}, s{sUN[j]}, 4\ns_lshl_b32 s{sB1}, s{sN2}, 7\ns_add_u32 s{sB0}, s{sB0}, s{sB1}"
            srdn = W2; vb = 4
        else:
            jj = j - 7
            s0 = f"s_lshl_b32 s{sB0}, s{sW}, 8\ns_lshl_b32 s{sB1}, s{sN2}, 16\ns_add_u32 s{sB0}, s{sB0}, s{sB1}"
            if jj >> 1: s0 += f"\ns_add_u32 s{sB0}, s{sB0}, 128"
            srdn = CIM if jj & 1 else CRE; vb = 8
        return (dman(pre + f"s_add_u32 m0, s{sM0}, {pos}\n" + s0, vb, srdn, sB0)
              + dman(f"s_add_u32 m0, s{sM0}, {pos+4096}\ns_add_u32 s{sB0}, s{sB0}, 32768", vb, srdn, sB0))

    stamp("karg", 2)
    A.push("c0", xu_item(0)); A.push("c1", xu_item(1)); A.force(12)
    stamp("c1 issued", 2)
    e(f"v_and_b32 v29, 31, v0\nv_lshl_add_u32 v3, s{sCB}, 5, v29\nv_lshlrev_b32 v3, 1, v3")
    tp0 = A.vmem("global_load_ushort v142, v3, s[18:19]", heavy=False)
    tp1 = A.vmem("global_load_ushort v143, v3, s[20:21]", heavy=False)
    tp2 = A.vmem("global_load_ushort v144, v3, s[30:31]", heavy=False)
    with nobg:
        e(f"s_or_b32 s100, s100, 1\ns_or_b32 s{sT0}, s2, s{sW}\ns_cmp_lg_u32 s{sT0}, 0\ns_cbranch_scc1 L_nononce")
        e("v_mov_b32 v1, s100\nv_mov_b32 v3, 0\ns_mov_b64 exec, 1")
        e("global_store_dword v3, v1, s[44:45] sc1")
        e("s_mov_b64 exec, -1")
        e("L_nononce:")
    XA, BA, UA, TAhi, VO1, FT, VZ, TAlo = 13, 17, 21, 23, 25, 26, 28, 29
    e(f"s_lshl_b32 s{sT0}, s{sW}, 13\ns_and_b32 s{sT1}, s{sW}, 1\ns_lshl_b32 s{sT1}, s{sT1}, 6\nv_xor_b32 v8, s{sT1}, v2\nv_lshl_add_u32 v8, v30, 10, v8\nv_add_u32 v8, s{sT0}, v8")
    e(f"s_lshl_b32 s{sUB}, s{sCB}, 15\ns_lshl_b32 s{sUM}, s{sW}, 10\ns_mov_b32 s{sKB}, " + (f"s{sXCD}" if ROT else "0"))
    e(f"v_and_b32 v1, 1, v30\nv_cmp_eq_u32 vcc, v1, v12\nv_and_b32 v1, 6, v30\nv_lshlrev_b32 v1, 1, v1\nv_mov_b32 v3, {OOB:#x}\nv_cndmask_b32 v1, v3, v1, vcc")
    e(f"s_cmp_eq_u32 s{sT2}, 3\ns_cselect_b64 vcc, -1, 0\nv_add_u32 v11, 128, v9\nv_add_u32 v12, 128, v10\nv_add_u32 v3, 1024, v1\nv_add_u32 v1, 16, v1\nv_cndmask_b32 v11, v11, v3, vcc\nv_cndmask_b32 v12, v12, v1, vcc")
    e("s_sub_u32 s40, s40, 1024\ns_subb_u32 s41, s41, 0")
    A.push("c2", xu_item(2)); A.push("c3", xu_item(3))
    A.next_bg = A.t
    srd(56, 22, 512 * 1024); srd(60, 24, 512 * 1024); srd(68, 26, 512 * 1024); srd(72, 28, 512 * 1024)
    e(f"s_mov_b32 s{sUS}, {KSTR}\ns_mov_b32 s{sT3}, 4096\ns_cmp_eq_u32 s{sT2}, 3\ns_cselect_b32 s24, s40, s36\ns_cselect_b32 s25, s41, s37\ns_cselect_b32 s26, 0x800, s54\ns_mov_b32 s27, 0x20000\ns_cselect_b32 s{sUS}, 128, s{sUS}\ns_cselect_b32 s{sT3}, {OOB:#x}, s{sT3}")
    srd(64, 38, 1792 * 1024); srd(76, 46, WS_SIZE); srd(80, 42, 2048 * 2048)
    e("v_lshlrev_b32 v31, 4, v0")
    e(f"v_add_u32 v{VO1}, s{sT3}, v31")
    e("v_lshrrev_b32 v1, 5, v0\nv_bfe_u32 v2, v0, 1, 3\nv_xor_b32 v2, v2, v1\nv_lshlrev_b32 v2, 4, v2")
    e(f"v_lshl_add_u32 v{BA}, v29, 7, v2\nv_xor_b32 v{BA+1}, 32, v{BA}\nv_xor_b32 v{BA+2}, 64, v{BA}\nv_xor_b32 v{BA+3}, 96, v{BA}")
    e(f"s_add_u32 s{sT0}, s{sM0}, 65536\n" + "\n".join(f"v_add_u32 v{XA+s}, s{sT0}, v{BA+s}" for s in range(4)))
    e("v_bfe_u32 v2, v0, 2, 2\nv_lshl_add_u32 v3, v1, 3, v2\nv_lshl_add_u32 v1, v1, 2, v2\nv_bfe_u32 v2, v0, 3, 1\nv_lshlrev_b32 v2, 6, v2")
    e(f"v_bfe_u32 v{UA}, v0, 4, 1\nv_lshl_add_u32 v2, v{UA}, 5, v2\nv_and_b32 v{UA}, 3, v0\nv_lshl_add_u32 v2, v{UA}, 3, v2")
    e(f"v_lshl_add_u32 v{UA}, v3, 7, v2\nv_xor_b32 v{UA+1}, 64, v{UA}")
    e(f"s_and_b32 s{sT0}, s{sW}, 1\ns_lshl_b32 s{sT0}, s{sT0}, 6\nv_lshl_add_u32 v1, v1, 7, v2\nv_xor_b32 v1, s{sT0}, v1\nv_add_u32 v{TAlo}, s{sM0}, v1\nv_xor_b32 v{TAlo+1}, 64, v{TAlo}")
    e(f"v_add_u32 v{TAhi}, 0x10000, v{TAlo}\nv_add_u32 v{TAhi+1}, 0x10000, v{TAlo+1}")
    e(f"s_lshl_b32 s{sT0}, s{sW}, 9\ns_add_u32 s{sT0}, s{sT0}, {L_EBUF}\nv_lshl_add_u32 v1, v0, 3, s{sT0}\nv_mov_b32 v2, 0\nv_mov_b32 v3, 0")
    A.ds("ds_write_b64 v1, v[2:3]")
    SC = [f"s_lshl_b32 s{sT0}, s{sCB}, 13\ns_sub_u32 s{sT1}, 16, s{sRB}\ns_lshl_b32 s{sT1}, s{sT1}, 9\ns_add_u32 s{sT0}, s{sT0}, s{sT1}\ns_add_u32 s{sT0}, s{sT0}, {WS_AGG:#x}\ns_add_u32 s84, s46, s{sT0}\ns_addc_u32 s85, s47, 0",
          f"s_lshl_b32 s86, s{sRB}, 9\ns_mov_b32 s87, 0x20000\ns_mul_i32 s{sT3}, s{sW}, 7"]
    for j in range(4):
        SC.append(f"s_add_u32 s{sT0}, s{sXCD}, {j}\ns_and_b32 s{sT0}, s{sT0}, 3\ns_lshl_b32 s{sT0}, s{sT0}, 1\ns_add_u32 s{sT0}, s{sT0}, s{sT3}\ns_lshl_b32 s{sUN[j]}, s{sT0}, 12")
    SC.append(f"s_mul_i32 s{sT1}, s{sXCD}, 43\ns_lshr_b32 s{sT1}, s{sT1}, 7\ns_mul_i32 s{sT1}, s{sT1}, 3\ns_sub_u32 s{sT1}, s{sXCD}, s{sT1}\ns_add_u32 s{sT3}, s{sT3}, 1")
    for j in range(4, 7):
        SC.append(f"s_lshl_b32 s{sT0}, s{sT1}, 1\ns_add_u32 s{sT0}, s{sT0}, s{sT3}\ns_lshl_b32 s{sUN[j]}, s{sT0}, 12" + (f"\ns_add_u32 s{sT1}, s{sT1}, 1\ns_cmp_eq_u32 s{sT1}, 3\ns_cselect_b32 s{sT1}, 0, s{sT1}" if j < 6 else ""))
    SC.append(f"s_lshr_b32 s{sT0}, s{sXB}, 15\ns_mul_i32 s{sH0}, s{sT0}, {RT_PITCH}\ns_lshl_b32 s{sH1}, s{sH1}, 12\ns_add_u32 s{sH1}, s{sH1}, s{sH0}")
    for p in SC: e(p)

    Lr, Li, L16r, L16i, PWr, PWi, L128r, L128i, L1Kr, L1Ki, C2r, C2i = range(128, 140)
    LOCr, LOCi = 140, 141
    def csq(dr, di, sr, si):
        return [f"v_mul_f32 v{dr}, v{sr}, v{sr}", f"v_mul_f32 v{di}, v{sr}, v{si}", f"v_fma_f32 v{dr}, -v{si}, v{si}, v{dr}", f"v_add_f32 v{di}, v{di}, v{di}"]
    def cmul_l(dr, di, ar, ai, br, bi):
        return [f"v_mul_f32 v{dr}, v{ar}, v{br}", f"v_mul_f32 v{di}, v{ar}, v{bi}", f"v_fma_f32 v{dr}, -v{ai}, v{bi}, v{dr}", f"v_fmac_f32 v{di}, v{ai}, v{br}"]
    def cfma_l(dr, di, lr, li, sr, si, ar, ai):
        return [f"v_fma_f32 v{dr}, v{lr}, v{sr}, v{ar}", f"v_fma_f32 v{di}, v{lr}, v{si}, v{ai}", f"v_fma_f32 v{dr}, -v{li}, v{si}, v{dr}", f"v_fmac_f32 v{di}, v{li}, v{sr}"]
    P = [lambda: A.wait(vm=tp2)] + f"""v_lshlrev_b32 v142, 16, v142
v_lshlrev_b32 v143, 16, v143
v_lshlrev_b32 v144, 16, v144
v_mul_f32 v144, 0x3fb8aa3b, v144
v_exp_f32 v144, v144
v_cvt_pk_bf16_f32 v144, v144, v144
v_lshlrev_b32 v144, 16, v144
v_mul_f32 v145, v144, v142
v_mul_f32 v146, v144, v143
v_mul_f32 v145, 0x3fb8aa3b, v145
v_exp_f32 v145, v145
v_mul_f32 v146, 0.15915494, v146
v_rndne_f32 v147, v146
v_sub_f32 v146, v146, v147
v_cos_f32 v147, v146
v_sin_f32 v148, v146
v_mul_f32 v{Lr}, v145, v147
v_mul_f32 v{Li}, v145, v148
v_add_f32 v144, -1.0, v{Lr}
v_mul_f32 v145, v142, v142
v_fmac_f32 v145, v143, v143
v_rcp_f32 v145, v145
v_mul_f32 v146, v144, v142
v_add_f32 v145, v145, v145
v_fmac_f32 v146, v{Li}, v143
v_mul_f32 v{C2r}, v146, v145
v_mul_f32 v147, v{Li}, v142
v_fma_f32 v147, -v144, v143, v147
v_mul_f32 v{C2i}, v147, v145""".split("\n")
    P += csq(142, 143, Lr, Li) + csq(144, 145, 142, 143) + csq(142, 143, 144, 145) + csq(L16r, L16i, 142, 143)
    P += csq(142, 143, L16r, L16i) + ["v_cmp_lt_u32 vcc, 31, v0", f"v_cndmask_b32 v146, 1.0, v{L16r}, vcc", f"v_cndmask_b32 v147, 0, v{L16i}, vcc"]
    P += csq(144, 145, 142, 143) + [f"s_bitcmp1_b32 s{sW}, 0\ns_cselect_b64 vcc, -1, 0", "v_cndmask_b32 v142, 1.0, v142, vcc", "v_cndmask_b32 v143, 0, v143, vcc"]
    P += cmul_l(148, 149, 146, 147, 142, 143) + csq(L128r, L128i, 144, 145)
    P += [f"s_bitcmp1_b32 s{sW}, 1\ns_cselect_b64 vcc, -1, 0", "v_cndmask_b32 v144, 1.0, v144, vcc", "v_cndmask_b32 v145, 0, v145, vcc"]
    P += cmul_l(PWr, PWi, 148, 149, 144, 145)
    P += csq(142, 143, L128r, L128i) + csq(144, 145, 142, 143) + csq(L1Kr, L1Ki, 144, 145)
    EA, GA, FA, AGA, AGE = 150, 151, 156, 158, 159
    P += [f"s_lshl_b32 s{sT2}, s{sW}, 9\ns_add_u32 s{sT2}, s{sT2}, {L_EBUF}\nv_lshrrev_b32 v1, 5, v0", "v_and_b32 v2, 31, v0", f"v_lshlrev_b32 v{GA}, 4, v2", f"v_lshl_add_u32 v{AGA}, v1, 12, v{GA}",
          f"v_lshlrev_b32 v{AGE}, 3, v1", f"v_sub_u32 v{AGE}, s{sRB}, v{AGE}", f"v_med3_i32 v{AGE}, v{AGE}, 0, 8",
          "v_lshlrev_b32 v1, 8, v1", "v_lshl_add_u32 v1, v2, 3, v1", f"v_add_u32 v{EA}, s{sT2}, v1",
          "v_bfe_u32 v2, v0, 2, 1", "v_lshlrev_b32 v2, 4, v2", "v_and_b32 v3, 3, v0", "v_add_u32 v1, v2, v3",
          f"s_lshl_b32 s{sT2}, s{sM2}, 5\ns_lshl_b32 s{sT3}, s{sW}, 2\ns_add_u32 s{sT2}, s{sT2}, s{sT3}\nv_add_u32 v2, s{sT2}, v1", f"v_lshlrev_b32 v{FA}, 7, v2",
          "v_bfe_u32 v2, v0, 3, 2", "v_lshl_add_u32 v1, v2, 2, v1", "v_lshlrev_b32 v157, 2, v1"]

    XF = 0; UT = 128; BFA = 160
    ACR, ACI, AU0, AU1 = 32, 48, 64, 96
    WRL = {0: [192 + 4 * i for i in range(8)], 1: [224 + 4 * i for i in range(8)], 2: [160 + 4 * i for i in range(8)]}
    T = {}; rtok = {}; w2r_last = {}
    def reads(g):
        st, m = g >> 1, g & 1
        ps, u = st >> 5, st & 31
        c, s = u >> 2, u & 3
        if ps == 1:
            b = BFA + 8 * (u & 3) + 4 * m
            rtok[g] = A.ds(f"ds_read_b128 a[{b}:{b+3}], v{BA+s} offset:{c*8192 + m*4096}")
        else:
            if ps == 0 and m == 0:
                r = XF + 4 * u
                A.ds(f"ds_read_b128 a[{r}:{r+3}], v{XA+s} offset:{(c & 3) * 4096}")
            t = UT + 4 * (g % 8); off = c * 8192 + 16 * s * 128
            A.ds(f"ds_read_b64_tr_b16 a[{t}:{t+1}], v{UA+m} offset:{off}")
            rtok[g] = A.ds(f"ds_read_b64_tr_b16 a[{t+2}:{t+3}], v{UA+m} offset:{off + 512}")
    def w2r_piece(j, k):
        ks, dts = k >> 1, k & 1
        pos = POS[j]; hi = pos >= 65536; off = pos & 0xffff
        if k == 0: A.wait(vm=A.token(f"R{j}"))
        t = WRL[j][k]; ar = (TAhi if hi else TAlo) + dts
        A.ds(f"ds_read_b64_tr_b16 a[{t}:{t+1}], v{ar} offset:{off + 16*ks*128}")
        w2r_last[j] = A.ds(f"ds_read_b64_tr_b16 a[{t+2}:{t+3}], v{ar} offset:{off + (16*ks+8)*128}")
    sFL = 31
    def flag_store(base):
        with nobg:
            e(f"s_add_u32 s{sT0}, s{sFL}, {base:#x}\ns_mov_b64 exec, 1")
            A.vmem(f"buffer_store_dwordx2 v[{FT}:{FT+1}], off, {WS}, s{sT0} sc1", heavy=False)
            e("s_mov_b64 exec, -1")
    def nonce_get():
        A.wait(vm=T["nonce"])
        with nobg:
            e(f"v_readfirstlane_b32 s{sN0}, v{VZ}\ns_cmp_lg_u32 s{sN0}, 0\ns_cbranch_scc1 L_nonce_ok")
            e(f"s_mov_b32 s{sCNT}, {SPIN}\nv_mov_b32 v{FT}, 0\nL_nonce_loop:\ns_sleep 2\nglobal_load_dword v{VZ}, v{FT}, s[44:45] sc1\ns_waitcnt vmcnt(0)")
            e(f"v_readfirstlane_b32 s{sN0}, v{VZ}\ns_cmp_lg_u32 s{sN0}, 0\ns_cbranch_scc1 L_nonce_ok")
            e(f"s_sub_u32 s{sCNT}, s{sCNT}, 1\ns_cmp_lg_u32 s{sCNT}, 0\ns_cbranch_scc1 L_nonce_loop\nL_nonce_ok:")
        e(f"s_not_b32 s{sN1}, s{sN0}\nv_mov_b32 v{FT}, s{sN0}\nv_mov_b32 v154, s{sN0}\nv_mov_b32 v{FT+1}, s{sN1}\nv_mov_b32 v155, s{sN1}")
        e(f"s_lshr_b32 s{sFL}, s{sXB}, 11\ns_add_u32 s{sFL}, s{sFL}, s{sCB}\ns_lshl_b32 s{sFL}, s{sFL}, 7")
    def u_epi(acc, vaddr, key):
        L = []
        for k in range(4):
            a0 = acc + 8 * k
            L += [f"v_cvt_pk_bf16_f32 v{a0+i}, v{a0+2*i}, v{a0+2*i+1}" for i in range(4)]
            L += [f"v_pk_max_i16 v{a0+i}, v{a0+i}, 0" for i in range(4)]
            def st(a0=a0, k=k): T[key] = A.vmem(f"buffer_store_dwordx4 v[{a0}:{a0+3}], v{vaddr}, {WS}, s{sH1} offen offset:{k*1024} sc1")
            L.append(st)
        return L
    S1 = []
    pp = [(142, 143), (144, 145)]; cur = (ACR, ACI)
    for v in range(1, 16):
        d = pp[v & 1]; S1 += cfma_l(d[0], d[1], Lr, Li, cur[0], cur[1], ACR + v, ACI + v); cur = d
    Er, Ei = cur
    def e_write(): T["ew"] = A.ds(f"ds_write_b64 v{EA}, v[{Er}:{Ei}] offset:{7*256}")
    S1.append(e_write)
    def e_reads():
        for k in range(7): T["er"] = A.ds(f"ds_read_b64 v[{160+2*k}:{161+2*k}], v{EA} offset:{k*256}")
    BUS = []
    for v in range(16):
        BUS += [f"v_mul_f32 v1, v{C2i}, v{ACR+v}", f"v_mul_f32 v{ACR+v}, v{C2r}, v{ACR+v}", f"v_fma_f32 v{ACR+v}, -v{C2i}, v{ACI+v}, v{ACR+v}", f"v_fma_f32 v{ACI+v}, v{C2r}, v{ACI+v}, v1"]
    S2 = [e_reads] + BUS[:8] + [lambda: A.wait(lg=T["er"])]
    cur = (160, 161)
    for k in range(1, 7):
        d = [(LOCr, LOCi), (146, 147)][k & 1]
        S2 += cfma_l(d[0], d[1], L16r, L16i, cur[0], cur[1], 160 + 2 * k, 161 + 2 * k); cur = d
    S2 += cfma_l(152, 153, L16r, L16i, LOCr, LOCi, Er, Ei)
    def agg_store():
        with nobg:
            e(f"s_cmp_lg_u32 s{sW}, 3\ns_cbranch_scc1 L_noagg")
            e(f"s_lshl_b32 s{sT0}, s{sCB}, 4\ns_add_u32 s{sT0}, s{sT0}, 15\ns_sub_u32 s{sT0}, s{sT0}, s{sRB}\ns_lshl_b32 s{sT0}, s{sT0}, 9\ns_add_u32 s{sT0}, s{sT0}, {WS_AGG:#x}")
            e("s_mov_b32 exec_lo, 0")
            e(f"buffer_store_dwordx4 v[152:155], v{GA}, {WS}, s{sT0} offen sc1")
            e("s_mov_b64 exec, -1\nL_noagg:")
        stamp("agg published")
    S2 += [agg_store] + BUS[8:]
    def agg_loads(tracked=True):
        for k in range(8):
            s = f"buffer_load_dwordx4 v[{160+4*k}:{163+4*k}], v{AGA}, {AGG}, 0 offen offset:{k*512} sc1"
            if tracked: T["agt"] = A.vmem(s)
            else: e(s)
    def flag_load(base, tracked=True):
        with nobg:
            e(f"s_mov_b32 s{sT0}, {base:#x}\ns_mov_b64 exec, 0xff")
            s = f"buffer_load_dwordx2 v[148:149], v{FA}, {WS}, s{sT0} offen sc1"
            t = A.vmem(s, heavy=False) if tracked else e(s)
            e("s_mov_b64 exec, -1")
        return t
    def flag_check(lbl):
        e(f"v_cmp_ne_u64 vcc, {NN}, v[148:149]\ns_and_b32 s{sT0}, vcc_lo, 0xff\ns_cbranch_scc0 {lbl}")
    def flag_wait(tok, base, name):
        A.wait(vm=tok)
        with nobg:
            flag_check(f"L_{name}_ok")
            e(f"s_mov_b32 s{sCNT}, {SPIN}\nL_{name}_loop:\ns_sleep 1")
            flag_load(base, tracked=False)
            e("s_waitcnt vmcnt(0)")
            flag_check(f"L_{name}_ok")
            e(f"s_sub_u32 s{sCNT}, s{sCNT}, 1\ns_cmp_lg_u32 s{sCNT}, 0\ns_cbranch_scc1 L_{name}_loop\nL_{name}_ok:")

    if TX:
        e(f"s_lshr_b32 s{sT0}, s2, 6\ns_lshl_b32 s{sT0}, s{sT0}, 13\ns_add_u32 s{sT0}, s{sT0}, s{sXB}")
        e(f"v_lshrrev_b32 v2, 3, v0\nv_add_u32 v2, " + (f"s{sXCD}" if ROT else "0") + ", v2\nv_add_u32 v2, 4, v2\nv_and_b32 v2, 7, v2\nv_and_b32 v3, 7, v0\nv_lshlrev_b32 v3, 10, v3\nv_lshl_add_u32 v240, v2, 7, v3")
        def tx():
            e("s_mov_b32 exec_hi, 0")
            t = A.vmem(f"buffer_load_dword v241, v240, {X}, s{sH0T} offen")
            e("s_mov_b64 exec, -1")
            return t
        e(f"s_mov_b32 s{sH0T}, s{sT0}")
        A.push("tx", [tx])
    A.wait(vm=A.token("c0"), lg=A.lg)
    e("s_barrier")
    stamp("chunk0 landed", 2)
    for g in range(DU): reads(g)
    F += P
    for g in range(192):
        st, m = g >> 1, g & 1
        ps, u = st >> 5, st & 31
        c, s = u >> 2, u & 3
        vs = st - 32
        if m == 0:
            if st in (8, 16, 24): stamp(f"p1_{st}", 3)
            if st in (32, 40, 48): stamp(f"st{st}", 3)
            if st in (56, 64, 72, 80, 88): stamp(f"st{st}", 4)
            if st == 32:
                assert not F
                stamp("pass1 done"); A.cad = CADW
                F += u_epi(AU0, 31, "u0st") + [nonce_get]
            if st == 64: stamp("pass2 done"); F += S1
            if vs == EB:
                assert "ew" in T
                A.wait(lg=T["ew"]); e("s_barrier"); F += S2
            if vs == F0S: A.wait(vm=T["u0st"]); flag_store(WS_F0); stamp("F0 stored", 4)
            if vs == F0L: T["f0"] = flag_load(WS_F0)
            if vs == AGL: agg_loads()
            for j, s0 in ((0, W0), (1, W1S), (2, W2S)):
                if vs == s0 + 9:
                    A.wait(lg=w2r_last[j]); A.push(f"R{j+2}", ring_item(j + 2))
            A.wait(lg=rtok[g + 1])
            if ps == 0 and s == 3 and c + 4 < 8:
                A.token(f"c{c+3}"); A.push_front(f"c{c+4}", xu_item(c + 4))
            if st == 31: A.push("R0", ring_item(0)); A.push("R1", ring_item(1))
        xr = XF + 4 * u
        if ps == 1:
            b = BFA + 8 * (u & 3) + 4 * m; acc = ACI if m else ACR
            e(f"v_mfma_f32_32x32x16_bf16 v[{acc}:{acc+15}], a[{xr}:{xr+3}], a[{b}:{b+3}], " + ("0" if u == 0 else f"v[{acc}:{acc+15}]"))
        else:
            t = UT + 4 * (g % 8); acc = (AU1 if ps else AU0) + 16 * m
            e(f"v_mfma_f32_32x32x16_bf16 v[{acc}:{acc+15}], a[{t}:{t+3}], a[{xr}:{xr+3}], " + ("0" if u == 0 else f"v[{acc}:{acc+15}]"))
        gn = g + DU
        if gn < 64 and gn % 8 == 0:
            cn = gn // 8
            A.wait(vm=A.token(f"c{cn}"))
            if cn <= 3: stamp(f"preBC{cn}", 2)
            e("s_barrier")
            if cn >= 2: A.push(f"w{8+cn-2}", w_item(8 + cn - 2))
            if cn == 5:
                e(f"v_mov_b32 v{FT}, 0")
                T["nonce"] = A.vmem(f"global_load_dword v{VZ}, v{FT}, s[44:45] sc1", heavy=False)
        elif 64 <= gn < 192 and gn % 16 == 0:
            k = (gn - 64) // 16
            A.wait(vm=A.token(f"w{9+2*k}"))
            e("s_barrier")
            if 1 <= k and k + 2 <= 7:
                A.token(f"w{9+2*(k+1)}")
                A.push_front(f"w{9+2*(k+2)}", w_item(8 + 2 * (k + 2)) + w_item(9 + 2 * (k + 2)))
        if gn < 192: reads(gn)
        for j, s0 in ((0, W0), (1, W1S), (2, W2S)):
            if m == 1 and s0 <= vs < s0 + 8: w2r_piece(j, vs - s0)
        if ps == 0: fill(PF if g >= 4 else 0)
        elif ps == 1: fill(2)
        else: fill(4 if vs < EB else (NF3 // 2 + (m if NF3 % 2 else 0)))
    stamp("pass3 done")
    A.off += 1
    fill(1000)
    e("s_barrier")
    A.push("R5", ring_item(5)); A.push("R6", ring_item(6))
    sC0, sC1 = sKC, sWB
    e(f"s_lshr_b32 s{sT0}, s{sW}, 1\ns_lshl_b32 s{sT1}, s{sM2}, 1\ns_add_u32 s{sT0}, s{sT0}, s{sT1}\ns_mul_i32 s{sC0}, s{sT0}, {RT_PITCH}\ns_xor_b32 s{sT2}, s{sT0}, 1\ns_mul_i32 s{sC1}, s{sT2}, {RT_PITCH}\ns_lshl_b32 s{sP}, s{sT0}, 15")
    HB = 0; WF = [96, 104, 112]; ACC2 = 64
    def h_item(n):
        j, ks = n >> 2, n & 3
        r = HB + 8 * (n % HD)
        def f0():
            if ks == 0:
                if j < 7: e(f"s_add_u32 s{sU0}, s{sUN[j]}, s{sC0}\ns_add_u32 s{sU1}, s{sUN[j]}, s{sC1}")
                else: e(f"s_lshl_b32 s{sU1}, s{sW}, 14\ns_add_u32 s{sU1}, s{sU1}, {(28 + j - 7) * 4096}\ns_add_u32 s{sU0}, s{sU1}, s{sC0}\ns_add_u32 s{sU1}, s{sU1}, s{sC1}")
            return A.vmem(f"buffer_load_dwordx4 a[{r}:{r+3}], v31, {WS}, s{sU0} offen offset:{ks*1024} sc1")
        def f1():
            return A.vmem(f"buffer_load_dwordx4 a[{r+4}:{r+7}], v31, {WS}, s{sU1} offen offset:{ks*1024} sc1")
        A.push(f"H{n}", [f0, f1], prio=0)
    e(f"v_add_f32 v{VZ}, v{AU1}, v{AU1+5}")
    F += u_epi(AU1, VO1, "u1st"); fill(1000)
    e(f"s_lshr_b32 s{sT0}, s{sXB}, 8\ns_lshr_b32 s{sT1}, s{sCB}, 2\ns_lshl_b32 s{sT1}, s{sT1}, 13\ns_add_u32 s{sT0}, s{sT0}, s{sT1}\ns_add_u32 s{sT0}, s{sT0}, {WS_GZ:#x}\ns_cmp_eq_u32 s{sUS}, 128\ns_cselect_b32 s{sT1}, 0, {OOB:#x}\nv_add_u32 v157, s{sT1}, v157\ns_mov_b32 exec_hi, 0")
    T["u1st"] = A.vmem(f"buffer_store_dword v{VZ}, v157, {WS}, s{sT0} offen sc1", heavy=False)
    e("s_mov_b64 exec, -1")
    flag_wait(T["f0"], WS_F0, "f0")
    stamp("F0 seen")
    for n in range(HD): h_item(n)
    A.force_q(0, 4)
    def cnt():
        e("v_mov_b32 v146, 0")
        for k in range(8): e(f"v_cmp_eq_u64 vcc, {NN}, v[{162+4*k}:{163+4*k}]\nv_addc_co_u32 v146, vcc, 0, v146, vcc")
        e(f"v_cmp_ne_u32 vcc, v146, v{AGE}\ns_cbranch_vccz L_ag_ok")
    A.wait(vm=T["agt"])
    cnt()
    e(f"s_mov_b32 s{sCNT}, {SPIN}\nL_ag_loop:\ns_sleep 1")
    agg_loads(False)
    e("s_waitcnt vmcnt(0)")
    cnt()
    e(f"s_sub_u32 s{sCNT}, s{sCNT}, 1\ns_cmp_lg_u32 s{sCNT}, 0\ns_cbranch_scc1 L_ag_loop\nL_ag_ok:")
    stamp("agg seen")
    AG1 = []
    cur = (160 + 28, 161 + 28)
    for k in range(6, -1, -1):
        d = [(142, 143), (144, 145)][k & 1]
        AG1 += cfma_l(d[0], d[1], L128r, L128i, cur[0], cur[1], 160 + 4 * k, 161 + 4 * k); cur = d
    AG1 += ["v_mov_b32 v144, v142", "v_mov_b32 v145, v143", f"s_mul_i32 s{sT2}, s{sW}, 4608\ns_add_u32 s{sT2}, s{sT2}, {L_TRP}\nv_and_b32 v152, 31, v0", "v_mul_u32_u24 v152, 72, v152",
            "v_permlane32_swap_b32 v142, v144", "v_permlane32_swap_b32 v143, v145", "v_lshrrev_b32 v2, 5, v0"]
    AG1 += cfma_l(146, 147, L1Kr, L1Ki, 144, 145, 142, 143) + cfma_l(142, 143, PWr, PWi, 146, 147, LOCr, LOCi) + cmul_l(144, 145, C2r, C2i, 142, 143)
    AG1 += ["v_lshl_add_u32 v152, v2, 3, v152", f"v_add_u32 v152, s{sT2}, v152"]
    cur = (144, 145)
    for v in range(16):
        AG1 += [f"v_fmac_f32 v{ACR+v}, v{Lr}, v{cur[0]}", f"v_fmac_f32 v{ACI+v}, v{Lr}, v{cur[1]}", f"v_fma_f32 v{ACR+v}, -v{Li}, v{cur[1]}, v{ACR+v}", f"v_fmac_f32 v{ACI+v}, v{Li}, v{cur[0]}"]
        cur = (ACR + v, ACI + v)
        if v % 4 == 3:
            q = v >> 2
            AG1 += [f"v_cvt_pk_bf16_f32 v{160+4*q}, v{ACR+4*q}, v{ACR+4*q+1}", f"v_cvt_pk_bf16_f32 v{161+4*q}, v{ACR+4*q+2}, v{ACR+4*q+3}",
                    f"v_cvt_pk_bf16_f32 v{162+4*q}, -v{ACI+4*q}, -v{ACI+4*q+1}", f"v_cvt_pk_bf16_f32 v{163+4*q}, -v{ACI+4*q+2}, -v{ACI+4*q+3}"]
            def tw(q=q):
                A.ds(f"ds_write_b64 v152, v[{160+4*q}:{161+4*q}] offset:{16*q}")
                T["tw"] = A.ds(f"ds_write_b64 v152, v[{162+4*q}:{163+4*q}] offset:{2304+16*q}")
            AG1.append(tw)
    AG1 += ["v_bfe_u32 v3, v0, 2, 2", "v_lshl_add_u32 v153, v2, 3, v3", "v_mul_u32_u24 v153, 72, v153", "v_bfe_u32 v3, v0, 4, 1", "v_lshl_add_u32 v153, v3, 5, v153", "v_and_b32 v3, 3, v0", "v_lshl_add_u32 v153, v3, 3, v153", f"v_add_u32 v153, s{sT2}, v153"]
    F += AG1
    k = 0
    while F:
        fill(1); k += 1
        if k % H1 == 0: A.force_q(0, 1)
    A.force_q(0, 100)
    A.wait(lg=T["tw"])
    for part in range(2):
        for kk in range(2):
            r = 176 + 8 * part + 4 * kk
            A.ds(f"ds_read_b64_tr_b16 v[{r}:{r+1}], v153 offset:{part*2304 + 16*kk*72}")
            T[("tr", part, kk)] = A.ds(f"ds_read_b64_tr_b16 v[{r+2}:{r+3}], v153 offset:{part*2304 + (16*kk+4)*72}")
    e(f"s_lshr_b32 s{sT0}, s{sCB}, 1\ns_lshl_b32 s{sT0}, s{sT0}, 13\ns_and_b32 s{sT1}, s{sCB}, 1\ns_lshl_b32 s{sT1}, s{sT1}, 11\ns_add_u32 s{sT0}, s{sT0}, s{sT1}\ns_add_u32 s{sT0}, s{sT0}, s{sH0}\ns_add_u32 s{sT0}, s{sT0}, {28*4096}\ns_add_u32 s{sT1}, s{sT0}, 4096")
    for part in range(2):
        for kk in range(2):
            r = 176 + 8 * part + 4 * kk
            A.wait(lg=T[("tr", part, kk)])
            T["hs"] = A.vmem(f"buffer_store_dwordx4 v[{r}:{r+3}], v31, {WS}, s{sT1 if part else sT0} offen offset:{kk*1024} sc1")
    stamp("scan done")
    XV = 192; CA = 208; GV = 224
    XL = [f"s_and_b32 s{sT1}, s{sW}, 1\ns_lshl_b32 s{sT2}, s{sN2}, 1\ns_add_u32 s{sT1}, s{sT1}, s{sT2}\ns_lshl_b32 s{sT1}, s{sT1}, 6\ns_add_u32 s{sXB}, s{sP}, s{sT1}\nv_and_b32 v2, 31, v0\nv_lshl_add_u32 v151, v2, 1, s{sT1}",
          "v_lshrrev_b32 v1, 5, v0", "v_lshlrev_b32 v1, 14, v1", "v_lshl_add_u32 v150, v2, 1, v1",
          lambda: A.vmem("global_load_ushort v152, v151, s[32:33]", heavy=False)]
    for v in range(16):
        def xl(v=v):
            if v % 4 == 0: e(f"s_add_u32 s{sT3}, s{sXB}, {v*1024}")
            T["xv"] = A.vmem(f"buffer_load_ushort v{XV+v}, v150, {X}, s{sT3} offen offset:{(v%4)*1024}", heavy=False)
        XL.append(xl)
    XL.append(f"s_and_b32 s{sT2}, s{sW}, 1\ns_lshl_b32 s{sT2}, s{sT2}, 12\ns_add_u32 s{sT2}, s{sM0}, s{sT2}")
    for b in range(4):
        XL += [f"v_add_u32 v{CA+b}, s{sT2}, v{BA+b}", f"v_xor_b32 v{CA+4+b}, 0x1000, v{CA+b}", f"v_add_u32 v{CA+8+b}, 0x10000, v{CA+b}", f"v_add_u32 v{CA+12+b}, 0x10000, v{CA+4+b}"]
    wft = {}
    def w_reads(n):
        j, ks = n >> 2, n & 3
        if j < 3: return
        pos = POS[j]; hi = pos >= 65536; off = pos & 0xffff
        if ks == 0: A.wait(vm=A.token(f"R{j}"))
        for dts in range(2):
            t = WF[n % 3] + 4 * dts
            if j < 7:
                ar = (TAhi if hi else TAlo) + dts
                A.ds(f"ds_read_b64_tr_b16 a[{t}:{t+1}], v{ar} offset:{off + 16*ks*128}")
                wft[n] = A.ds(f"ds_read_b64_tr_b16 a[{t+2}:{t+3}], v{ar} offset:{off + (16*ks+8)*128}")
            else:
                ar = CA + (8 if hi else 0) + 4 * dts + ks
                wft[n] = A.ds(f"ds_read_b128 a[{t}:{t+3}], v{ar} offset:{off}")
    def gz_load():
        e(f"s_lshl_b32 s{sT0}, s{sM2}, 8\ns_lshl_b32 s{sT1}, s{sW}, 13\ns_add_u32 s{sT0}, s{sT0}, s{sT1}\ns_add_u32 s{sT0}, s{sT0}, {WS_GZ:#x}\nv_lshlrev_b32 v1, 2, v0")
        T["gz"] = A.vmem(f"buffer_load_dword v{VZ}, v1, {WS}, s{sT0} offen sc1", heavy=False)
    z = VZ
    G1 = [lambda: A.wait(vm=T["gz"]), f"v_cvt_pk_bf16_f32 v{z}, v{z}, v{z}", f"v_lshlrev_b32 v{z}, 16, v{z}", f"v_mul_f32 v{z}, 0xbfb8aa3b, v{z}", f"v_exp_f32 v{z}, v{z}", f"v_add_f32 v{z}, 1.0, v{z}", f"v_rcp_f32 v{z}, v{z}",
          f"v_cvt_pk_bf16_f32 v{z}, v{z}, v{z}", f"v_lshlrev_b32 v{z}, 16, v{z}", f"v_sub_f32 v142, 1.0, v{z}", "v_cvt_pk_bf16_f32 v142, v142, v142", "v_lshlrev_b32 v142, 16, v142",
          f"v_max_f32 v{z}, 0x21800000, v{z}", f"v_rcp_f32 v153, v{z}", f"s_lshl_b32 s{sT2}, s{sW}, 9\ns_add_u32 s{sT2}, s{sT2}, {L_RG}\nv_lshl_add_u32 v154, v0, 2, s{sT2}", "v_mul_f32 v142, v142, v153"]
    def rg_write():
        A.ds("ds_write_b32 v154, v142"); T["rgw"] = A.ds(f"ds_write_b32 v154, v{z} offset:256")
    def rg_read(i):
        def f():
            if i == 0: A.wait(lg=T["rgw"])
            for q in range(4):
                dst = [32, 48, GV][i] + 4 * q
                T["rg"] = A.ds(f"ds_read_b128 v[{dst}:{dst+3}], v{[143, 144, 143][i]} offset:{(256 if i == 2 else 0) + 16*q}")
        return f
    G1 += [rg_write, f"s_lshr_b32 s{sT3}, s{sW}, 1\ns_lshl_b32 s{sT3}, s{sT3}, 7\ns_add_u32 s{sT2}, s{sT2}, s{sT3}\nv_lshrrev_b32 v143, 5, v0", f"v_lshl_add_u32 v143, v143, 6, s{sT2}", "v_xor_b32 v144, 128, v143",
           rg_read(0), rg_read(1), rg_read(2)]
    F += XL
    k = 0
    while F:
        fill(1); k += 1
        if k % 5 == 0: A.force_q(1, 1)
    for n in range(44):
        j, ks = n >> 2, n & 3
        if n == 0: A.wait(vm=T["u1st"]); flag_store(WS_F1); stamp("F1 stored", 5)
        if n == FST: A.wait(vm=T["hs"]); flag_store(WS_FS); stamp("FS stored", 5)
        if n == F1S - 1: T["f1"] = flag_load(WS_F1)
        if n == FSS - 1: T["fs"] = flag_load(WS_FS)
        if n == F1S:
            flag_wait(T["f1"], WS_F1, "f1"); stamp("F1 seen", 5)
            for k in range(16, min(n + HD, 28)): h_item(k)
            A.force_q(0, 4)
            gz_load()
        if n == F1S + 5: F.extend(G1)
        if n == FSS:
            flag_wait(T["fs"], WS_FS, "fs"); stamp("FS seen", 6)
            for k in range(28, n + HD): h_item(k)
            A.force_q(0, 4)
        if n == 28:
            assert not F
            A.wait(vm=T["xv"], lg=T["rg"])
            for b in range(4):
                for v in range(16):
                    e(f"v_mul_f32 v{ACC2+16*b+v}, v{ACC2+16*b+v}, v{(32 if b < 2 else 48)+v}")
                A.force_q(0, 1)
            for v in range(16): e(f"v_dot2c_f32_bf16 v{ACC2+v}, v{XV+v}, v152")
        A.wait(vm=A.token(f"H{n}"), lg=(w2r_last[j] if j < 3 else wft[n]))
        if n in (0, 4, 12, 16): stamp(f"s2_{n}", 5)
        if n in (20, 24, 28, 32, 38, 43): stamp(f"s2_{n}", 6)
        for b in ((0, 1, 2, 3) if n != 28 else (3, 2, 1, 0)):
            bt, bd = b >> 1, b & 1
            h = HB + 8 * (n % HD) + 4 * bt; acc = ACC2 + 16 * b
            t = WRL[j][2 * ks + bd] if j < 3 else WF[n % 3] + 4 * bd
            e(f"v_mfma_f32_32x32x16_bf16 v[{acc}:{acc+15}], a[{h}:{h+3}], a[{t}:{t+3}], " + ("0" if n == 0 else f"v[{acc}:{acc+15}]"))
            if b == 0 and ks == 3 and 3 <= j <= 6: A.push(f"R{j+4}", ring_item(j + 4))
            if b == 0 and n + 2 < 44: w_reads(n + 2)
            if b in (0, 2): A.force_q(0, 1 if len(A.q[0]) <= 2 else 2)
            if b == 1 or (b == 3 and not A.q[0]): A.force_q(1, 1)
            fill(3)
        k = n + HD
        if k < 44 and (k < 16 or (k < 28 and n >= F1S) or n >= FSS): h_item(k)
    assert not A.q[0] and not A.q[1]
    RO = {1: PA, 2: PA + 4096, 3: PB}
    e(f"s_add_u32 s{sT0}, s{sM0}, 65536\nv_add_u32 v1, s{sT0}, v31")
    e("v_xor_b32 v3, 0x4000, v1\nv_xor_b32 v4, 0x8000, v1\nv_xor_b32 v5, 0xc000, v1")
    e(f"v_lshrrev_b32 v6, 5, v0\nv_lshlrev_b32 v6, 15, v6\nv_and_b32 v7, 31, v0\nv_lshl_add_u32 v6, v7, 2, v6\ns_lshl_b32 s{sXB}, s{sXB}, 1")
    for b in (1, 2, 3):
        for q in range(4):
            r = ACC2 + 16 * b + 4 * q
            A.ds(f"ds_write_b128 v1, v[{r}:{r+3}] offset:{RO[b] - 65536 + q*1024}")
    A.wait(lg=A.lg)
    e("s_barrier")
    rt = {}
    for q in range(4):
        for b in (1, 2, 3):
            r = 128 + 16 * (b - 1) + 4 * q
            rt[(q, b)] = A.ds(f"ds_read_b128 v[{r}:{r+3}], v{2+b} offset:{RO[b] - 65536 + q*1024}")
    for q in range(4):
        A.wait(lg=rt[(q, 3)])
        for i in range(4):
            v = 4 * q + i
            e(f"v_add_f32 v{128+v}, v{128+v}, v{144+v}\nv_add_f32 v{ACC2+v}, v{ACC2+v}, v{160+v}\nv_add_f32 v{ACC2+v}, v{ACC2+v}, v{128+v}\nv_mul_f32 v{ACC2+v}, v{ACC2+v}, v{GV+v}")
            if v % 2 == 0 and v > 0: e(f"s_add_u32 s{sXB}, s{sXB}, 4096")
            A.L.append(f"buffer_store_dword v{ACC2+v}, v6, {OUT}, s{sXB} offen offset:{(v%2)*2048}")
    if stamps:
        e("s_waitcnt vmcnt(0)")
        stamp("end")
        e("s_memrealtime s[34:35]\ns_waitcnt lgkmcnt(0)")
        e(f"s_lshl_b32 s{sT0}, s2, 2\ns_add_u32 s{sT0}, s{sT0}, s{sW}\ns_lshl_b32 s{sT0}, s{sT0}, 6\ns_add_u32 s{sT0}, s{sT0}, {WS_STAMP:#x}\nv_mov_b32 v1, 0")
        for i, r in enumerate(used):
            e(f"s_sub_u32 s{sT1}, s{r}, s14\nv_mov_b32 v2, s{sT1}\nbuffer_store_dword v2, v1, {WS}, s{sT0} offen offset:{4*i}")
        e(f"v_mov_b32 v2, s34\nbuffer_store_dword v2, v1, {WS}, s{sT0} offen offset:60")
        e(f"s_andn2_b32 s100, s100, 1\nv_mov_b32 v2, s100\nbuffer_store_dword v2, v1, {WS}, s{sT0} offen offset:56")
    e("L_end:\ns_endpgm")
    body = A.text()
    hdr = HEADER + f"; @launch grid=(256,1,1) block=(256,1,1) lds={LDS_BYTES}\n"
    if stamps: hdr += "; STAMPS: " + " | ".join(stamp_names) + "\n"
    hdr += '.amdgcn_target "amdgcn-amd-amdhsa--gfx950"\n.text\n' + f".globl {KNAME}\n.p2align 8\n.type {KNAME},@function\n"
    tail = f""".section .rodata,"a"
.p2align 6
.amdhsa_kernel {KNAME}
  .amdhsa_next_free_vgpr 512
  .amdhsa_next_free_sgpr 102
  .amdhsa_accum_offset 256
  .amdhsa_group_segment_fixed_size 0
  .amdhsa_kernarg_size 128
  .amdhsa_user_sgpr_count 2
  .amdhsa_user_sgpr_kernarg_segment_ptr 1
  .amdhsa_system_sgpr_workgroup_id_x 1
.end_amdhsa_kernel
"""
    return hdr + body + tail

if __name__ == "__main__":
    out = sys.argv[1] if len(sys.argv) > 1 else "k.s"
    kw = {}
    for a in sys.argv[2:]:
        k, v = a.split("="); kw[k] = int(v)
    open(out, "w").write(gen(**kw))
```

```python
import sys
from asmlib import Sched

KNAME = "gated_mix__ssm_conv_s5__dense_activation_relu__prompt_kernel"
HEADER = open("gated_mix__ssm_conv_s5__dense_activation_relu__prompt.s.ref").read().split("; Override")[0]

RT_PITCH = 44 * 4096
WS_F0, WS_F1, WS_FS = 0xB00000, 0xB20000, 0xB40000
WS_AGG, WS_GZ, WS_STAMP, WS_SIZE = 0xB60000, 0xB80000, 0xB90000, 0xBA0000
OOB = 0x40000000
L_MISC = 131072
L_EBUF = L_MISC
L_TRP  = L_MISC + 4096
L_RG   = L_MISC + 4096 + 18432
LDS_BYTES = L_RG + 2048
PA, PB, PC, PD = 65536, 65536 + 8192, 0, 8192
POS = {0: PA, 1: PB, 2: PA, 3: PB, 4: PA, 5: PC, 6: PD, 7: PB, 8: PA, 9: PC, 10: PD}
KSTR = 64 * 3584

def gen(stamps=0, SPIN=20000, CAD=64, BURST=3, HD=12, LB=3, DU=6, ROT=1,
        W0=27, W1S=36, W2S=53, F0S=30, F0L=58, AGL=60, F1S=9, FST=6, FSS=18, TX=0, H1=10, WSOFF=0, OUTF=0, DMAF=0, PF=2, EB=42, CADW=80, NF3=4):
    A = Sched(CAD, BURST); e = A.e
    sW, sRB, sCB, sM2, sN2, sKB, sXCD, sN0, sN1 = 3, 4, 5, 6, 7, 8, 9, 10, 11
    NN = "s[10:11]"
    X, W1, BRE, BIM, W2, CRE, CIM, WS, OUT, AGG = [f"s[{b}:{b+3}]" for b in range(48, 88, 4)]
    sXB, sWB, sM0, sKC, sT0, sT1, sT2, sT3, sH0, sH1, sCNT, sP = 88, 89, 90, 91, 92, 93, 94, 95, 96, 97, 98, 99
    sB0, sB1, sU0, sU1 = 12, 13, 42, 43
    sUN = [34, 35, 36, 37, 38, 39, 47]
    sH0T = 46
    sUM, sUB, sUS = 20, 21, 30
    U1S = "s[24:27]"
    stamp_regs = [0, 16, 18, 22, 28, 40, 44]
    used = []; stamp_names = []
    def stamp(name, sset=1):
        if stamps == sset or (stamps and name == "end"):
            r = 32 if name == "end" else stamp_regs[len(used)]
            used.append(r); stamp_names.append(name)
            A.L.append(f"s_memtime s[{r}:{r+1}]")
    def srd(base, ptr, size):
        e(f"s_mov_b32 s{base}, s{ptr}\ns_mov_b32 s{base+1}, s{ptr+1}\ns_mov_b32 s{base+2}, {size:#x}\ns_mov_b32 s{base+3}, 0x20000")
    class NoBG:
        def __enter__(s): A.off += 1
        def __exit__(s, *a): A.off -= 1
    nobg = NoBG()
    F = []
    def fill(k):
        while k > 0 and F:
            p = F.pop(0)
            if callable(p): p()
            else: e(p)
            k -= 1

    e(f"{KNAME}:")
    e("s_cmp_ge_u32 s2, 256\ns_cbranch_scc1 L_end")
    e("s_load_dwordx16 s[16:31], s[0:1], 0")
    e("s_load_dwordx16 s[32:47], s[0:1], 64")
    e("s_memrealtime s[100:101]")
    if stamps: e("s_memtime s[14:15]")
    e("v_lshrrev_b32 v1, 6, v0")
    e("v_and_b32 v0, 63, v0")
    e(f"v_readfirstlane_b32 s{sW}, v1")
    e(f"s_and_b32 s{sXCD}, s2, 7\ns_lshr_b32 s{sT1}, s2, 3")
    e(f"s_and_b32 s{sN2}, s{sT1}, 7\ns_lshr_b32 s{sT2}, s{sT1}, 3")
    e(f"s_and_b32 s{sRB}, s{sXCD}, 1\ns_lshl_b32 s{sRB}, s{sRB}, 3\ns_add_u32 s{sRB}, s{sRB}, s{sN2}")
    e(f"s_lshr_b32 s{sT0}, s{sXCD}, 1\ns_lshl_b32 s{sCB}, s{sT0}, 2\ns_add_u32 s{sCB}, s{sCB}, s{sT2}")
    e(f"s_lshl_b32 s{sM2}, s{sXCD}, 2\ns_add_u32 s{sM2}, s{sM2}, s{sT2}")
    e(f"s_mul_i32 s{sT0}, s{sT0}, 7\ns_lshl_b32 s{sH1}, s{sT2}, 1\ns_add_u32 s{sH1}, s{sH1}, s{sT0}")
    e(f"s_lshl_b32 s{sXB}, s{sRB}, 2\ns_add_u32 s{sXB}, s{sXB}, s{sW}\ns_lshl_b32 s{sXB}, s{sXB}, 15")
    e(f"s_lshl_b32 s{sM0}, s{sW}, 14\ns_lshl_b32 s{sP}, s{sW}, 11\ns_lshl_b32 s{sT0}, s{sH1}, 7\ns_mul_i32 s{sWB}, s{sW}, {16*3584}\ns_add_u32 s{sWB}, s{sWB}, s{sT0}")
    e("v_lshrrev_b32 v1, 4, v0\nv_and_b32 v12, 7, v0\nv_xor_b32 v2, v12, v1\nv_lshlrev_b32 v2, 4, v2")
    e("v_lshrrev_b32 v3, 5, v0\nv_lshlrev_b32 v3, 14, v3")
    e("v_bfe_u32 v4, v0, 3, 2\nv_lshl_add_u32 v3, v4, 10, v3")
    e("v_add_u32 v4, v3, v2\nv_xor_b32 v8, 64, v2\nv_add_u32 v5, v3, v8\nv_add_u32 v5, 3072, v5")
    e("v_add_u32 v6, 6144, v4\nv_add_u32 v7, 6144, v5")
    e("v_lshrrev_b32 v30, 3, v0\nv_mul_u32_u24 v9, 3584, v30\nv_and_b32 v1, 1, v1\nv_lshlrev_b32 v1, 2, v1\nv_xor_b32 v12, v12, v1\nv_lshl_add_u32 v9, v12, 4, v9")
    e(f"v_add_u32 v10, {8*3584-1024}, v9")
    e(f"s_mov_b32 s{sKC}, " + (f"s{sXCD}" if ROT else "0") + f"\ns_mov_b32 s50, {2048*1024:#x}\ns_mov_b32 s51, 0x20000\ns_mov_b32 s54, {512*3584:#x}\ns_mov_b32 s55, 0x20000")
    e("s_waitcnt lgkmcnt(0)")
    e("s_mov_b32 s48, s16\ns_mov_b32 s49, s17\ns_mov_b32 s52, s36\ns_mov_b32 s53, s37")

    def dman(setup, vb, srdn, sreg, n=4):
        fns = []
        for i in range(n):
            def f(i=i):
                if i == 0: e(setup)
                return A.vmem(f"buffer_load_dwordx4 v{vb+i}, {srdn}, s{sreg} offen offset:{i*1024} " + ["", "nt ", "sc1 "][DMAF] + "lds")
            fns.append(f)
        return fns
    def adv(r): return f"\ns_add_u32 s{r}, s{r}, 1\ns_and_b32 s{r}, s{r}, 7"
    def xu_item(c):
        if ROT:
            sx = f"s_lshl_b32 s{sB0}, s{sKC}, 7\ns_add_u32 s{sB0}, s{sB0}, s{sXB}"
            su = f"s_mul_i32 s{sB1}, s{sKC}, {KSTR}\ns_add_u32 s{sB1}, s{sB1}, s{sWB}" + adv(sKC)
        else:
            sx = f"s_add_u32 s{sB0}, s{sXB}, {c*128}"; su = f"s_add_u32 s{sB1}, s{sWB}, {c*KSTR}"
        return (dman(f"s_add_u32 m0, s{sM0}, {65536 + (c&3)*4096}\n" + sx, 4, X, sB0) + dman(f"s_add_u32 m0, s{sP}, {c*8192}\n" + su, 9, W1, sB1, 2))
    def w_item(q):
        c = q & 7
        if q < 16:
            sb = (f"s_lshl_b32 s{sB0}, s{sKB}, 7\ns_add_u32 s{sB0}, s{sB0}, s{sUB}" + adv(sKB)) if ROT else f"s_add_u32 s{sB0}, s{sUB}, {c*128}"
            return dman(f"s_add_u32 m0, s{sUM}, {c*8192}\n" + sb, 8, BRE, sB0, 1) + dman(f"s_add_u32 m0, s{sUM}, {c*8192+4096}\ns_nop 0", 8, BIM, sB0, 1)
        pre = ""
        if q == 16:
            pre = f"s_lshl_b32 s{sUM}, s{sUM}, 1\ns_lshl_b32 s{sB0}, s{sW}, 5\ns_cmp_eq_u32 s{sUS}, 128\ns_cselect_b32 s{sUB}, s{sB0}, s{sWB}\n"
        if ROT: su = f"s_mul_i32 s{sB0}, s{sKB}, s{sUS}\ns_add_u32 s{sB0}, s{sB0}, s{sUB}" + adv(sKB)
        else: su = f"s_mov_b32 s{sB0}, s{sUB}\ns_add_u32 s{sUB}, s{sUB}, s{sUS}"
        return dman(pre + f"s_add_u32 m0, s{sUM}, {c*8192}\n" + su, 11, U1S, sB0, 2)
    def ring_item(j):
        pos = POS[j]
        pre = ""
        if j == 0:
            pre = ("v_lshrrev_b32 v7, 3, v0\nv_lshlrev_b32 v7, 10, v7\nv_bfe_u32 v6, v0, 4, 1\nv_lshlrev_b32 v6, 2, v6\nv_and_b32 v5, 7, v0\nv_xor_b32 v6, v6, v5\nv_lshl_add_u32 v4, v6, 4, v7\n"
                   "v_add_u32 v5, 7168, v4\nv_add_u32 v6, 14336, v4\nv_add_u32 v7, 21504, v4\n")
        if j == 7:
            pre = ("v_lshrrev_b32 v11, 3, v0\nv_lshlrev_b32 v11, 10, v11\nv_lshrrev_b32 v10, 4, v0\nv_and_b32 v9, 7, v0\nv_xor_b32 v10, v10, v9\nv_lshl_add_u32 v8, v10, 4, v11\n"
                   "v_xor_b32 v9, 64, v8\nv_add_u32 v9, 7168, v9\nv_add_u32 v10, 14336, v8\nv_add_u32 v11, 14336, v9\n")
        if j < 7:
            s0 = f"s_lshl_b32 s{sB0}, s{sUN[j]}, 4\ns_lshl_b32 s{sB1}, s{sN2}, 7\ns_add_u32 s{sB0}, s{sB0}, s{sB1}"
            srdn = W2; vb = 4
        else:
            jj = j - 7
            s0 = f"s_lshl_b32 s{sB0}, s{sW}, 8\ns_lshl_b32 s{sB1}, s{sN2}, 16\ns_add_u32 s{sB0}, s{sB0}, s{sB1}"
            if jj >> 1: s0 += f"\ns_add_u32 s{sB0}, s{sB0}, 128"
            srdn = CIM if jj & 1 else CRE; vb = 8
        return (dman(pre + f"s_add_u32 m0, s{sM0}, {pos}\n" + s0, vb, srdn, sB0)
              + dman(f"s_add_u32 m0, s{sM0}, {pos+4096}\ns_add_u32 s{sB0}, s{sB0}, 32768", vb, srdn, sB0))

    stamp("karg", 2)
    A.push("c0", xu_item(0)); A.push("c1", xu_item(1)); A.force(12)
    stamp("c1 issued", 2)
    e(f"v_and_b32 v29, 31, v0\nv_lshl_add_u32 v3, s{sCB}, 5, v29\nv_lshlrev_b32 v3, 1, v3")
    tp0 = A.vmem("global_load_ushort v142, v3, s[18:19]", heavy=False)
    tp1 = A.vmem("global_load_ushort v143, v3, s[20:21]", heavy=False)
    tp2 = A.vmem("global_load_ushort v144, v3, s[30:31]", heavy=False)
    with nobg:
        e(f"s_or_b32 s100, s100, 1\ns_or_b32 s{sT0}, s2, s{sW}\ns_cmp_lg_u32 s{sT0}, 0\ns_cbranch_scc1 L_nononce")
        e("v_mov_b32 v1, s100\nv_mov_b32 v3, 0\ns_mov_b64 exec, 1")
        e("global_store_dword v3, v1, s[44:45] sc1")
        e("s_mov_b64 exec, -1")
        e("L_nononce:")
    XA, BA, UA, TAhi, VO1, FT, VZ, TAlo = 13, 17, 21, 23, 25, 26, 28, 29
    e(f"s_lshl_b32 s{sT0}, s{sW}, 13\ns_and_b32 s{sT1}, s{sW}, 1\ns_lshl_b32 s{sT1}, s{sT1}, 6\nv_xor_b32 v8, s{sT1}, v2\nv_lshl_add_u32 v8, v30, 10, v8\nv_add_u32 v8, s{sT0}, v8")
    e(f"s_lshl_b32 s{sUB}, s{sCB}, 15\ns_lshl_b32 s{sUM}, s{sW}, 10\ns_mov_b32 s{sKB}, " + (f"s{sXCD}" if ROT else "0"))
    e(f"v_and_b32 v1, 1, v30\nv_cmp_eq_u32 vcc, v1, v12\nv_and_b32 v1, 6, v30\nv_lshlrev_b32 v1, 1, v1\nv_mov_b32 v3, {OOB:#x}\nv_cndmask_b32 v1, v3, v1, vcc")
    e(f"s_cmp_eq_u32 s{sT2}, 3\ns_cselect_b64 vcc, -1, 0\nv_add_u32 v11, 128, v9\nv_add_u32 v12, 128, v10\nv_add_u32 v3, 1024, v1\nv_add_u32 v1, 16, v1\nv_cndmask_b32 v11, v11, v3, vcc\nv_cndmask_b32 v12, v12, v1, vcc")
    e("s_sub_u32 s40, s40, 1024\ns_subb_u32 s41, s41, 0")
    A.push("c2", xu_item(2)); A.push("c3", xu_item(3))
    A.next_bg = A.t
    srd(56, 22, 512 * 1024); srd(60, 24, 512 * 1024); srd(68, 26, 512 * 1024); srd(72, 28, 512 * 1024)
    e(f"s_mov_b32 s{sUS}, {KSTR}\ns_mov_b32 s{sT3}, 4096\ns_cmp_eq_u32 s{sT2}, 3\ns_cselect_b32 s24, s40, s36\ns_cselect_b32 s25, s41, s37\ns_cselect_b32 s26, 0x800, s54\ns_mov_b32 s27, 0x20000\ns_cselect_b32 s{sUS}, 128, s{sUS}\ns_cselect_b32 s{sT3}, {OOB:#x}, s{sT3}")
    if WSOFF: e(f"s_add_u32 s46, s46, {WSOFF << 20:#x}\ns_addc_u32 s47, s47, 0")
    srd(64, 38, 1792 * 1024); srd(76, 46, WS_SIZE); srd(80, 42, 2048 * 2048)
    e("v_lshlrev_b32 v31, 4, v0")
    e(f"v_add_u32 v{VO1}, s{sT3}, v31")
    e("v_lshrrev_b32 v1, 5, v0\nv_bfe_u32 v2, v0, 1, 3\nv_xor_b32 v2, v2, v1\nv_lshlrev_b32 v2, 4, v2")
    e(f"v_lshl_add_u32 v{BA}, v29, 7, v2\nv_xor_b32 v{BA+1}, 32, v{BA}\nv_xor_b32 v{BA+2}, 64, v{BA}\nv_xor_b32 v{BA+3}, 96, v{BA}")
    e(f"s_add_u32 s{sT0}, s{sM0}, 65536\n" + "\n".join(f"v_add_u32 v{XA+s}, s{sT0}, v{BA+s}" for s in range(4)))
    e("v_bfe_u32 v2, v0, 2, 2\nv_lshl_add_u32 v3, v1, 3, v2\nv_lshl_add_u32 v1, v1, 2, v2\nv_bfe_u32 v2, v0, 3, 1\nv_lshlrev_b32 v2, 6, v2")
    e(f"v_bfe_u32 v{UA}, v0, 4, 1\nv_lshl_add_u32 v2, v{UA}, 5, v2\nv_and_b32 v{UA}, 3, v0\nv_lshl_add_u32 v2, v{UA}, 3, v2")
    e(f"v_lshl_add_u32 v{UA}, v3, 7, v2\nv_xor_b32 v{UA+1}, 64, v{UA}")
    e(f"s_and_b32 s{sT0}, s{sW}, 1\ns_lshl_b32 s{sT0}, s{sT0}, 6\nv_lshl_add_u32 v1, v1, 7, v2\nv_xor_b32 v1, s{sT0}, v1\nv_add_u32 v{TAlo}, s{sM0}, v1\nv_xor_b32 v{TAlo+1}, 64, v{TAlo}")
    e(f"v_add_u32 v{TAhi}, 0x10000, v{TAlo}\nv_add_u32 v{TAhi+1}, 0x10000, v{TAlo+1}")
    e(f"s_lshl_b32 s{sT0}, s{sW}, 9\ns_add_u32 s{sT0}, s{sT0}, {L_EBUF}\nv_lshl_add_u32 v1, v0, 3, s{sT0}\nv_mov_b32 v2, 0\nv_mov_b32 v3, 0")
    A.ds("ds_write_b64 v1, v[2:3]")
    SC = [f"s_lshl_b32 s{sT0}, s{sCB}, 13\ns_sub_u32 s{sT1}, 16, s{sRB}\ns_lshl_b32 s{sT1}, s{sT1}, 9\ns_add_u32 s{sT0}, s{sT0}, s{sT1}\ns_add_u32 s{sT0}, s{sT0}, {WS_AGG:#x}\ns_add_u32 s84, s46, s{sT0}\ns_addc_u32 s85, s47, 0",
          f"s_lshl_b32 s86, s{sRB}, 9\ns_mov_b32 s87, 0x20000\ns_mul_i32 s{sT3}, s{sW}, 7"]
    for j in range(4):
        SC.append(f"s_add_u32 s{sT0}, s{sXCD}, {j}\ns_and_b32 s{sT0}, s{sT0}, 3\ns_lshl_b32 s{sT0}, s{sT0}, 1\ns_add_u32 s{sT0}, s{sT0}, s{sT3}\ns_lshl_b32 s{sUN[j]}, s{sT0}, 12")
    SC.append(f"s_mul_i32 s{sT1}, s{sXCD}, 43\ns_lshr_b32 s{sT1}, s{sT1}, 7\ns_mul_i32 s{sT1}, s{sT1}, 3\ns_sub_u32 s{sT1}, s{sXCD}, s{sT1}\ns_add_u32 s{sT3}, s{sT3}, 1")
    for j in range(4, 7):
        SC.append(f"s_lshl_b32 s{sT0}, s{sT1}, 1\ns_add_u32 s{sT0}, s{sT0}, s{sT3}\ns_lshl_b32 s{sUN[j]}, s{sT0}, 12" + (f"\ns_add_u32 s{sT1}, s{sT1}, 1\ns_cmp_eq_u32 s{sT1}, 3\ns_cselect_b32 s{sT1}, 0, s{sT1}" if j < 6 else ""))
    SC.append(f"s_lshr_b32 s{sT0}, s{sXB}, 15\ns_mul_i32 s{sH0}, s{sT0}, {RT_PITCH}\ns_lshl_b32 s{sH1}, s{sH1}, 12\ns_add_u32 s{sH1}, s{sH1}, s{sH0}")
    for p in SC: e(p)

    Lr, Li, L16r, L16i, PWr, PWi, L128r, L128i, L1Kr, L1Ki, C2r, C2i = range(128, 140)
    LOCr, LOCi = 140, 141
    def csq(dr, di, sr, si):
        return [f"v_mul_f32 v{dr}, v{sr}, v{sr}", f"v_mul_f32 v{di}, v{sr}, v{si}", f"v_fma_f32 v{dr}, -v{si}, v{si}, v{dr}", f"v_add_f32 v{di}, v{di}, v{di}"]
    def cmul_l(dr, di, ar, ai, br, bi):
        return [f"v_mul_f32 v{dr}, v{ar}, v{br}", f"v_mul_f32 v{di}, v{ar}, v{bi}", f"v_fma_f32 v{dr}, -v{ai}, v{bi}, v{dr}", f"v_fmac_f32 v{di}, v{ai}, v{br}"]
    def cfma_l(dr, di, lr, li, sr, si, ar, ai):
        return [f"v_fma_f32 v{dr}, v{lr}, v{sr}, v{ar}", f"v_fma_f32 v{di}, v{lr}, v{si}, v{ai}", f"v_fma_f32 v{dr}, -v{li}, v{si}, v{dr}", f"v_fmac_f32 v{di}, v{li}, v{sr}"]
    P = [lambda: A.wait(vm=tp2)] + f"""v_lshlrev_b32 v142, 16, v142
v_lshlrev_b32 v143, 16, v143
v_lshlrev_b32 v144, 16, v144
v_mul_f32 v144, 0x3fb8aa3b, v144
v_exp_f32 v144, v144
v_cvt_pk_bf16_f32 v144, v144, v144
v_lshlrev_b32 v144, 16, v144
v_mul_f32 v145, v144, v142
v_mul_f32 v146, v144, v143
v_mul_f32 v145, 0x3fb8aa3b, v145
v_exp_f32 v145, v145
v_mul_f32 v146, 0.15915494, v146
v_rndne_f32 v147, v146
v_sub_f32 v146, v146, v147
v_cos_f32 v147, v146
v_sin_f32 v148, v146
v_mul_f32 v{Lr}, v145, v147
v_mul_f32 v{Li}, v145, v148
v_add_f32 v144, -1.0, v{Lr}
v_mul_f32 v145, v142, v142
v_fmac_f32 v145, v143, v143
v_rcp_f32 v145, v145
v_mul_f32 v146, v144, v142
v_add_f32 v145, v145, v145
v_fmac_f32 v146, v{Li}, v143
v_mul_f32 v{C2r}, v146, v145
v_mul_f32 v147, v{Li}, v142
v_fma_f32 v147, -v144, v143, v147
v_mul_f32 v{C2i}, v147, v145""".split("\n")
    P += csq(142, 143, Lr, Li) + csq(144, 145, 142, 143) + csq(142, 143, 144, 145) + csq(L16r, L16i, 142, 143)
    P += csq(142, 143, L16r, L16i) + ["v_cmp_lt_u32 vcc, 31, v0", f"v_cndmask_b32 v146, 1.0, v{L16r}, vcc", f"v_cndmask_b32 v147, 0, v{L16i}, vcc"]
    P += csq(144, 145, 142, 143) + [f"s_bitcmp1_b32 s{sW}, 0\ns_cselect_b64 vcc, -1, 0", "v_cndmask_b32 v142, 1.0, v142, vcc", "v_cndmask_b32 v143, 0, v143, vcc"]
    P += cmul_l(148, 149, 146, 147, 142, 143) + csq(L128r, L128i, 144, 145)
    P += [f"s_bitcmp1_b32 s{sW}, 1\ns_cselect_b64 vcc, -1, 0", "v_cndmask_b32 v144, 1.0, v144, vcc", "v_cndmask_b32 v145, 0, v145, vcc"]
    P += cmul_l(PWr, PWi, 148, 149, 144, 145)
    P += csq(142, 143, L128r, L128i) + csq(144, 145, 142, 143) + csq(L1Kr, L1Ki, 144, 145)
    EA, GA, FA, AGA, AGE = 150, 151, 156, 158, 159
    P += [f"s_lshl_b32 s{sT2}, s{sW}, 9\ns_add_u32 s{sT2}, s{sT2}, {L_EBUF}\nv_lshrrev_b32 v1, 5, v0", "v_and_b32 v2, 31, v0", f"v_lshlrev_b32 v{GA}, 4, v2", f"v_lshl_add_u32 v{AGA}, v1, 12, v{GA}",
          f"v_lshlrev_b32 v{AGE}, 3, v1", f"v_sub_u32 v{AGE}, s{sRB}, v{AGE}", f"v_med3_i32 v{AGE}, v{AGE}, 0, 8",
          "v_lshlrev_b32 v1, 8, v1", "v_lshl_add_u32 v1, v2, 3, v1", f"v_add_u32 v{EA}, s{sT2}, v1",
          "v_bfe_u32 v2, v0, 2, 1", "v_lshlrev_b32 v2, 4, v2", "v_and_b32 v3, 3, v0", "v_add_u32 v1, v2, v3",
          f"s_lshl_b32 s{sT2}, s{sM2}, 5\ns_lshl_b32 s{sT3}, s{sW}, 2\ns_add_u32 s{sT2}, s{sT2}, s{sT3}\nv_add_u32 v2, s{sT2}, v1", f"v_lshlrev_b32 v{FA}, 7, v2",
          "v_bfe_u32 v2, v0, 3, 2", "v_lshl_add_u32 v1, v2, 2, v1", "v_lshlrev_b32 v157, 2, v1"]

    XF = 0; UT = 128; BFA = 160
    ACR, ACI, AU0, AU1 = 32, 48, 64, 96
    WRL = {0: [192 + 4 * i for i in range(8)], 1: [224 + 4 * i for i in range(8)], 2: [160 + 4 * i for i in range(8)]}
    T = {}; rtok = {}; w2r_last = {}
    def reads(g):
        st, m = g >> 1, g & 1
        ps, u = st >> 5, st & 31
        c, s = u >> 2, u & 3
        if ps == 1:
            b = BFA + 8 * (u & 3) + 4 * m
            rtok[g] = A.ds(f"ds_read_b128 a[{b}:{b+3}], v{BA+s} offset:{c*8192 + m*4096}")
        else:
            if ps == 0 and m == 0:
                r = XF + 4 * u
                A.ds(f"ds_read_b128 a[{r}:{r+3}], v{XA+s} offset:{(c & 3) * 4096}")
            t = UT + 4 * (g % 8); off = c * 8192 + 16 * s * 128
            A.ds(f"ds_read_b64_tr_b16 a[{t}:{t+1}], v{UA+m} offset:{off}")
            rtok[g] = A.ds(f"ds_read_b64_tr_b16 a[{t+2}:{t+3}], v{UA+m} offset:{off + 512}")
    def w2r_piece(j, k):
        ks, dts = k >> 1, k & 1
        pos = POS[j]; hi = pos >= 65536; off = pos & 0xffff
        if k == 0: A.wait(vm=A.token(f"R{j}"))
        t = WRL[j][k]; ar = (TAhi if hi else TAlo) + dts
        A.ds(f"ds_read_b64_tr_b16 a[{t}:{t+1}], v{ar} offset:{off + 16*ks*128}")
        w2r_last[j] = A.ds(f"ds_read_b64_tr_b16 a[{t+2}:{t+3}], v{ar} offset:{off + (16*ks+8)*128}")
    sFL = 31
    def flag_store(base):
        with nobg:
            e(f"s_add_u32 s{sT0}, s{sFL}, {base:#x}\ns_mov_b64 exec, 1")
            A.vmem(f"buffer_store_dwordx2 v[{FT}:{FT+1}], off, {WS}, s{sT0} sc1", heavy=False)
            e("s_mov_b64 exec, -1")
    def nonce_get():
        A.wait(vm=T["nonce"])
        with nobg:
            e(f"v_readfirstlane_b32 s{sN0}, v{VZ}\ns_cmp_lg_u32 s{sN0}, 0\ns_cbranch_scc1 L_nonce_ok")
            e(f"s_mov_b32 s{sCNT}, {SPIN}\nv_mov_b32 v{FT}, 0\nL_nonce_loop:\ns_sleep 2\nglobal_load_dword v{VZ}, v{FT}, s[44:45] sc1\ns_waitcnt vmcnt(0)")
            e(f"v_readfirstlane_b32 s{sN0}, v{VZ}\ns_cmp_lg_u32 s{sN0}, 0\ns_cbranch_scc1 L_nonce_ok")
            e(f"s_sub_u32 s{sCNT}, s{sCNT}, 1\ns_cmp_lg_u32 s{sCNT}, 0\ns_cbranch_scc1 L_nonce_loop\nL_nonce_ok:")
        e(f"s_not_b32 s{sN1}, s{sN0}\nv_mov_b32 v{FT}, s{sN0}\nv_mov_b32 v154, s{sN0}\nv_mov_b32 v{FT+1}, s{sN1}\nv_mov_b32 v155, s{sN1}")
        e(f"s_lshr_b32 s{sFL}, s{sXB}, 11\ns_add_u32 s{sFL}, s{sFL}, s{sCB}\ns_lshl_b32 s{sFL}, s{sFL}, 7")
    def u_epi(acc, vaddr, key):
        L = []
        for k in range(4):
            a0 = acc + 8 * k
            L += [f"v_cvt_pk_bf16_f32 v{a0+i}, v{a0+2*i}, v{a0+2*i+1}" for i in range(4)]
            L += [f"v_pk_max_i16 v{a0+i}, v{a0+i}, 0" for i in range(4)]
            def st(a0=a0, k=k): T[key] = A.vmem(f"buffer_store_dwordx4 v[{a0}:{a0+3}], v{vaddr}, {WS}, s{sH1} offen offset:{k*1024} sc1")
            L.append(st)
        return L
    S1 = []
    pp = [(142, 143), (144, 145)]; cur = (ACR, ACI)
    for v in range(1, 16):
        d = pp[v & 1]; S1 += cfma_l(d[0], d[1], Lr, Li, cur[0], cur[1], ACR + v, ACI + v); cur = d
    Er, Ei = cur
    def e_write(): T["ew"] = A.ds(f"ds_write_b64 v{EA}, v[{Er}:{Ei}] offset:{7*256}")
    S1.append(e_write)
    def e_reads():
        for k in range(7): T["er"] = A.ds(f"ds_read_b64 v[{160+2*k}:{161+2*k}], v{EA} offset:{k*256}")
    BUS = []
    for v in range(16):
        BUS += [f"v_mul_f32 v1, v{C2i}, v{ACR+v}", f"v_mul_f32 v{ACR+v}, v{C2r}, v{ACR+v}", f"v_fma_f32 v{ACR+v}, -v{C2i}, v{ACI+v}, v{ACR+v}", f"v_fma_f32 v{ACI+v}, v{C2r}, v{ACI+v}, v1"]
    S2 = [e_reads] + BUS[:8] + [lambda: A.wait(lg=T["er"])]
    cur = (160, 161)
    for k in range(1, 7):
        d = [(LOCr, LOCi), (146, 147)][k & 1]
        S2 += cfma_l(d[0], d[1], L16r, L16i, cur[0], cur[1], 160 + 2 * k, 161 + 2 * k); cur = d
    S2 += cfma_l(152, 153, L16r, L16i, LOCr, LOCi, Er, Ei)
    def agg_store():
        with nobg:
            e(f"s_cmp_lg_u32 s{sW}, 3\ns_cbranch_scc1 L_noagg")
            e(f"s_lshl_b32 s{sT0}, s{sCB}, 4\ns_add_u32 s{sT0}, s{sT0}, 15\ns_sub_u32 s{sT0}, s{sT0}, s{sRB}\ns_lshl_b32 s{sT0}, s{sT0}, 9\ns_add_u32 s{sT0}, s{sT0}, {WS_AGG:#x}")
            e("s_mov_b32 exec_lo, 0")
            e(f"buffer_store_dwordx4 v[152:155], v{GA}, {WS}, s{sT0} offen sc1")
            e("s_mov_b64 exec, -1\nL_noagg:")
        stamp("agg published")
    S2 += [agg_store] + BUS[8:]
    def agg_loads(tracked=True):
        for k in range(8):
            s = f"buffer_load_dwordx4 v[{160+4*k}:{163+4*k}], v{AGA}, {AGG}, 0 offen offset:{k*512} sc1"
            if tracked: T["agt"] = A.vmem(s)
            else: e(s)
    def flag_load(base, tracked=True):
        with nobg:
            e(f"s_mov_b32 s{sT0}, {base:#x}\ns_mov_b64 exec, 0xff")
            s = f"buffer_load_dwordx2 v[148:149], v{FA}, {WS}, s{sT0} offen sc1"
            t = A.vmem(s, heavy=False) if tracked else e(s)
            e("s_mov_b64 exec, -1")
        return t
    def flag_check(lbl):
        e(f"v_cmp_ne_u64 vcc, {NN}, v[148:149]\ns_and_b32 s{sT0}, vcc_lo, 0xff\ns_cbranch_scc0 {lbl}")
    def flag_wait(tok, base, name):
        A.wait(vm=tok)
        with nobg:
            flag_check(f"L_{name}_ok")
            e(f"s_mov_b32 s{sCNT}, {SPIN}\nL_{name}_loop:\ns_sleep 1")
            flag_load(base, tracked=False)
            e("s_waitcnt vmcnt(0)")
            flag_check(f"L_{name}_ok")
            e(f"s_sub_u32 s{sCNT}, s{sCNT}, 1\ns_cmp_lg_u32 s{sCNT}, 0\ns_cbranch_scc1 L_{name}_loop\nL_{name}_ok:")

    if TX:
        e(f"s_lshr_b32 s{sT0}, s2, 6\ns_lshl_b32 s{sT0}, s{sT0}, 13\ns_add_u32 s{sT0}, s{sT0}, s{sXB}")
        e(f"v_lshrrev_b32 v2, 3, v0\nv_add_u32 v2, " + (f"s{sXCD}" if ROT else "0") + ", v2\nv_add_u32 v2, 4, v2\nv_and_b32 v2, 7, v2\nv_and_b32 v3, 7, v0\nv_lshlrev_b32 v3, 10, v3\nv_lshl_add_u32 v240, v2, 7, v3")
        def tx():
            e("s_mov_b32 exec_hi, 0")
            t = A.vmem(f"buffer_load_dword v241, v240, {X}, s{sH0T} offen")
            e("s_mov_b64 exec, -1")
            return t
        e(f"s_mov_b32 s{sH0T}, s{sT0}")
        A.push("tx", [tx])
    A.wait(vm=A.token("c0"), lg=A.lg)
    e("s_barrier")
    stamp("chunk0 landed", 2)
    for g in range(DU): reads(g)
    F += P
    for g in range(192):
        st, m = g >> 1, g & 1
        ps, u = st >> 5, st & 31
        c, s = u >> 2, u & 3
        vs = st - 32
        if m == 0:
            if st in (8, 16, 24): stamp(f"p1_{st}", 3)
            if st in (32, 40, 48): stamp(f"st{st}", 3)
            if st in (56, 64, 72, 80, 88): stamp(f"st{st}", 4)
            if st == 32:
                assert not F
                stamp("pass1 done"); A.cad = CADW
                F += u_epi(AU0, 31, "u0st") + [nonce_get]
            if st == 64: stamp("pass2 done"); F += S1
            if vs == EB:
                assert "ew" in T
                A.wait(lg=T["ew"]); e("s_barrier"); F += S2
            if vs == F0S: A.wait(vm=T["u0st"]); flag_store(WS_F0); stamp("F0 stored", 4)
            if vs == F0L: T["f0"] = flag_load(WS_F0)
            if vs == AGL: agg_loads()
            for j, s0 in ((0, W0), (1, W1S), (2, W2S)):
                if vs == s0 + 9:
                    A.wait(lg=w2r_last[j]); A.push(f"R{j+2}", ring_item(j + 2))
            A.wait(lg=rtok[g + 1])
            if ps == 0 and s == 3 and c + 4 < 8:
                A.token(f"c{c+3}"); A.push_front(f"c{c+4}", xu_item(c + 4))
            if st == 31: A.push("R0", ring_item(0)); A.push("R1", ring_item(1))
        xr = XF + 4 * u
        if ps == 1:
            b = BFA + 8 * (u & 3) + 4 * m; acc = ACI if m else ACR
            e(f"v_mfma_f32_32x32x16_bf16 v[{acc}:{acc+15}], a[{xr}:{xr+3}], a[{b}:{b+3}], " + ("0" if u == 0 else f"v[{acc}:{acc+15}]"))
        else:
            t = UT + 4 * (g % 8); acc = (AU1 if ps else AU0) + 16 * m
            e(f"v_mfma_f32_32x32x16_bf16 v[{acc}:{acc+15}], a[{t}:{t+3}], a[{xr}:{xr+3}], " + ("0" if u == 0 else f"v[{acc}:{acc+15}]"))
        gn = g + DU
        if gn < 64 and gn % 8 == 0:
            cn = gn // 8
            A.wait(vm=A.token(f"c{cn}"))
            if cn <= 3: stamp(f"preBC{cn}", 2)
            e("s_barrier")
            if cn >= 2: A.push(f"w{8+cn-2}", w_item(8 + cn - 2))
            if cn == 5:
                e(f"v_mov_b32 v{FT}, 0")
                T["nonce"] = A.vmem(f"global_load_dword v{VZ}, v{FT}, s[44:45] sc1", heavy=False)
        elif 64 <= gn < 192 and gn % 16 == 0:
            k = (gn - 64) // 16
            A.wait(vm=A.token(f"w{9+2*k}"))
            e("s_barrier")
            if 1 <= k and k + 2 <= 7:
                A.token(f"w{9+2*(k+1)}")
                A.push_front(f"w{9+2*(k+2)}", w_item(8 + 2 * (k + 2)) + w_item(9 + 2 * (k + 2)))
        if gn < 192: reads(gn)
        for j, s0 in ((0, W0), (1, W1S), (2, W2S)):
            if m == 1 and s0 <= vs < s0 + 8: w2r_piece(j, vs - s0)
        if ps == 0: fill(PF if g >= 4 else 0)
        elif ps == 1: fill(2)
        else: fill(4 if vs < EB else (NF3 // 2 + (m if NF3 % 2 else 0)))
    stamp("pass3 done")
    A.off += 1
    fill(1000)
    e("s_barrier")
    A.push("R5", ring_item(5)); A.push("R6", ring_item(6))
    sC0, sC1 = sKC, sWB
    e(f"s_lshr_b32 s{sT0}, s{sW}, 1\ns_lshl_b32 s{sT1}, s{sM2}, 1\ns_add_u32 s{sT0}, s{sT0}, s{sT1}\ns_mul_i32 s{sC0}, s{sT0}, {RT_PITCH}\ns_xor_b32 s{sT2}, s{sT0}, 1\ns_mul_i32 s{sC1}, s{sT2}, {RT_PITCH}\ns_lshl_b32 s{sP}, s{sT0}, 15")
    HB = 0; WF = [96, 104, 112]; ACC2 = 64
    def h_item(n):
        j, ks = n >> 2, n & 3
        r = HB + 8 * (n % HD)
        def f0():
            if ks == 0:
                if j < 7: e(f"s_add_u32 s{sU0}, s{sUN[j]}, s{sC0}\ns_add_u32 s{sU1}, s{sUN[j]}, s{sC1}")
                else: e(f"s_lshl_b32 s{sU1}, s{sW}, 14\ns_add_u32 s{sU1}, s{sU1}, {(28 + j - 7) * 4096}\ns_add_u32 s{sU0}, s{sU1}, s{sC0}\ns_add_u32 s{sU1}, s{sU1}, s{sC1}")
            return A.vmem(f"buffer_load_dwordx4 a[{r}:{r+3}], v31, {WS}, s{sU0} offen offset:{ks*1024} sc1")
        def f1():
            return A.vmem(f"buffer_load_dwordx4 a[{r+4}:{r+7}], v31, {WS}, s{sU1} offen offset:{ks*1024} sc1")
        A.push(f"H{n}", [f0, f1], prio=0)
    e(f"v_add_f32 v{VZ}, v{AU1}, v{AU1+5}")
    F += u_epi(AU1, VO1, "u1st"); fill(1000)
    e(f"s_lshr_b32 s{sT0}, s{sXB}, 8\ns_lshr_b32 s{sT1}, s{sCB}, 2\ns_lshl_b32 s{sT1}, s{sT1}, 13\ns_add_u32 s{sT0}, s{sT0}, s{sT1}\ns_add_u32 s{sT0}, s{sT0}, {WS_GZ:#x}\ns_cmp_eq_u32 s{sUS}, 128\ns_cselect_b32 s{sT1}, 0, {OOB:#x}\nv_add_u32 v157, s{sT1}, v157\ns_mov_b32 exec_hi, 0")
    T["u1st"] = A.vmem(f"buffer_store_dword v{VZ}, v157, {WS}, s{sT0} offen sc1", heavy=False)
    e("s_mov_b64 exec, -1")
    flag_wait(T["f0"], WS_F0, "f0")
    stamp("F0 seen")
    for n in range(HD): h_item(n)
    A.force_q(0, 4)
    def cnt():
        e("v_mov_b32 v146, 0")
        for k in range(8): e(f"v_cmp_eq_u64 vcc, {NN}, v[{162+4*k}:{163+4*k}]\nv_addc_co_u32 v146, vcc, 0, v146, vcc")
        e(f"v_cmp_ne_u32 vcc, v146, v{AGE}\ns_cbranch_vccz L_ag_ok")
    A.wait(vm=T["agt"])
    cnt()
    e(f"s_mov_b32 s{sCNT}, {SPIN}\nL_ag_loop:\ns_sleep 1")
    agg_loads(False)
    e("s_waitcnt vmcnt(0)")
    cnt()
    e(f"s_sub_u32 s{sCNT}, s{sCNT}, 1\ns_cmp_lg_u32 s{sCNT}, 0\ns_cbranch_scc1 L_ag_loop\nL_ag_ok:")
    stamp("agg seen")
    AG1 = []
    cur = (160 + 28, 161 + 28)
    for k in range(6, -1, -1):
        d = [(142, 143), (144, 145)][k & 1]
        AG1 += cfma_l(d[0], d[1], L128r, L128i, cur[0], cur[1], 160 + 4 * k, 161 + 4 * k); cur = d
    AG1 += ["v_mov_b32 v144, v142", "v_mov_b32 v145, v143", f"s_mul_i32 s{sT2}, s{sW}, 4608\ns_add_u32 s{sT2}, s{sT2}, {L_TRP}\nv_and_b32 v152, 31, v0", "v_mul_u32_u24 v152, 72, v152",
            "v_permlane32_swap_b32 v142, v144", "v_permlane32_swap_b32 v143, v145", "v_lshrrev_b32 v2, 5, v0"]
    AG1 += cfma_l(146, 147, L1Kr, L1Ki, 144, 145, 142, 143) + cfma_l(142, 143, PWr, PWi, 146, 147, LOCr, LOCi) + cmul_l(144, 145, C2r, C2i, 142, 143)
    AG1 += ["v_lshl_add_u32 v152, v2, 3, v152", f"v_add_u32 v152, s{sT2}, v152"]
    cur = (144, 145)
    for v in range(16):
        AG1 += [f"v_fmac_f32 v{ACR+v}, v{Lr}, v{cur[0]}", f"v_fmac_f32 v{ACI+v}, v{Lr}, v{cur[1]}", f"v_fma_f32 v{ACR+v}, -v{Li}, v{cur[1]}, v{ACR+v}", f"v_fmac_f32 v{ACI+v}, v{Li}, v{cur[0]}"]
        cur = (ACR + v, ACI + v)
        if v % 4 == 3:
            q = v >> 2
            AG1 += [f"v_cvt_pk_bf16_f32 v{160+4*q}, v{ACR+4*q}, v{ACR+4*q+1}", f"v_cvt_pk_bf16_f32 v{161+4*q}, v{ACR+4*q+2}, v{ACR+4*q+3}",
                    f"v_cvt_pk_bf16_f32 v{162+4*q}, -v{ACI+4*q}, -v{ACI+4*q+1}", f"v_cvt_pk_bf16_f32 v{163+4*q}, -v{ACI+4*q+2}, -v{ACI+4*q+3}"]
            def tw(q=q):
                A.ds(f"ds_write_b64 v152, v[{160+4*q}:{161+4*q}] offset:{16*q}")
                T["tw"] = A.ds(f"ds_write_b64 v152, v[{162+4*q}:{163+4*q}] offset:{2304+16*q}")
            AG1.append(tw)
    AG1 += ["v_bfe_u32 v3, v0, 2, 2", "v_lshl_add_u32 v153, v2, 3, v3", "v_mul_u32_u24 v153, 72, v153", "v_bfe_u32 v3, v0, 4, 1", "v_lshl_add_u32 v153, v3, 5, v153", "v_and_b32 v3, 3, v0", "v_lshl_add_u32 v153, v3, 3, v153", f"v_add_u32 v153, s{sT2}, v153"]
    F += AG1
    k = 0
    while F:
        fill(1); k += 1
        if k % H1 == 0: A.force_q(0, 1)
    A.force_q(0, 100)
    A.wait(lg=T["tw"])
    for part in range(2):
        for kk in range(2):
            r = 176 + 8 * part + 4 * kk
            A.ds(f"ds_read_b64_tr_b16 v[{r}:{r+1}], v153 offset:{part*2304 + 16*kk*72}")
            T[("tr", part, kk)] = A.ds(f"ds_read_b64_tr_b16 v[{r+2}:{r+3}], v153 offset:{part*2304 + (16*kk+4)*72}")
    e(f"s_lshr_b32 s{sT0}, s{sCB}, 1\ns_lshl_b32 s{sT0}, s{sT0}, 13\ns_and_b32 s{sT1}, s{sCB}, 1\ns_lshl_b32 s{sT1}, s{sT1}, 11\ns_add_u32 s{sT0}, s{sT0}, s{sT1}\ns_add_u32 s{sT0}, s{sT0}, s{sH0}\ns_add_u32 s{sT0}, s{sT0}, {28*4096}\ns_add_u32 s{sT1}, s{sT0}, 4096")
    for part in range(2):
        for kk in range(2):
            r = 176 + 8 * part + 4 * kk
            A.wait(lg=T[("tr", part, kk)])
            T["hs"] = A.vmem(f"buffer_store_dwordx4 v[{r}:{r+3}], v31, {WS}, s{sT1 if part else sT0} offen offset:{kk*1024} sc1")
    stamp("scan done")
    XV = 192; CA = 208; GV = 224
    XL = [f"s_and_b32 s{sT1}, s{sW}, 1\ns_lshl_b32 s{sT2}, s{sN2}, 1\ns_add_u32 s{sT1}, s{sT1}, s{sT2}\ns_lshl_b32 s{sT1}, s{sT1}, 6\ns_add_u32 s{sXB}, s{sP}, s{sT1}\nv_and_b32 v2, 31, v0\nv_lshl_add_u32 v151, v2, 1, s{sT1}",
          "v_lshrrev_b32 v1, 5, v0", "v_lshlrev_b32 v1, 14, v1", "v_lshl_add_u32 v150, v2, 1, v1",
          lambda: A.vmem("global_load_ushort v152, v151, s[32:33]", heavy=False)]
    for v in range(16):
        def xl(v=v):
            if v % 4 == 0: e(f"s_add_u32 s{sT3}, s{sXB}, {v*1024}")
            T["xv"] = A.vmem(f"buffer_load_ushort v{XV+v}, v150, {X}, s{sT3} offen offset:{(v%4)*1024}", heavy=False)
        XL.append(xl)
    XL.append(f"s_and_b32 s{sT2}, s{sW}, 1\ns_lshl_b32 s{sT2}, s{sT2}, 12\ns_add_u32 s{sT2}, s{sM0}, s{sT2}")
    for b in range(4):
        XL += [f"v_add_u32 v{CA+b}, s{sT2}, v{BA+b}", f"v_xor_b32 v{CA+4+b}, 0x1000, v{CA+b}", f"v_add_u32 v{CA+8+b}, 0x10000, v{CA+b}", f"v_add_u32 v{CA+12+b}, 0x10000, v{CA+4+b}"]
    wft = {}
    def w_reads(n):
        j, ks = n >> 2, n & 3
        if j < 3: return
        pos = POS[j]; hi = pos >= 65536; off = pos & 0xffff
        if ks == 0: A.wait(vm=A.token(f"R{j}"))
        for dts in range(2):
            t = WF[n % 3] + 4 * dts
            if j < 7:
                ar = (TAhi if hi else TAlo) + dts
                A.ds(f"ds_read_b64_tr_b16 a[{t}:{t+1}], v{ar} offset:{off + 16*ks*128}")
                wft[n] = A.ds(f"ds_read_b64_tr_b16 a[{t+2}:{t+3}], v{ar} offset:{off + (16*ks+8)*128}")
            else:
                ar = CA + (8 if hi else 0) + 4 * dts + ks
                wft[n] = A.ds(f"ds_read_b128 a[{t}:{t+3}], v{ar} offset:{off}")
    def gz_load():
        e(f"s_lshl_b32 s{sT0}, s{sM2}, 8\ns_lshl_b32 s{sT1}, s{sW}, 13\ns_add_u32 s{sT0}, s{sT0}, s{sT1}\ns_add_u32 s{sT0}, s{sT0}, {WS_GZ:#x}\nv_lshlrev_b32 v1, 2, v0")
        T["gz"] = A.vmem(f"buffer_load_dword v{VZ}, v1, {WS}, s{sT0} offen sc1", heavy=False)
    z = VZ
    G1 = [lambda: A.wait(vm=T["gz"]), f"v_cvt_pk_bf16_f32 v{z}, v{z}, v{z}", f"v_lshlrev_b32 v{z}, 16, v{z}", f"v_mul_f32 v{z}, 0xbfb8aa3b, v{z}", f"v_exp_f32 v{z}, v{z}", f"v_add_f32 v{z}, 1.0, v{z}", f"v_rcp_f32 v{z}, v{z}",
          f"v_cvt_pk_bf16_f32 v{z}, v{z}, v{z}", f"v_lshlrev_b32 v{z}, 16, v{z}", f"v_sub_f32 v142, 1.0, v{z}", "v_cvt_pk_bf16_f32 v142, v142, v142", "v_lshlrev_b32 v142, 16, v142",
          f"v_max_f32 v{z}, 0x21800000, v{z}", f"v_rcp_f32 v153, v{z}", f"s_lshl_b32 s{sT2}, s{sW}, 9\ns_add_u32 s{sT2}, s{sT2}, {L_RG}\nv_lshl_add_u32 v154, v0, 2, s{sT2}", "v_mul_f32 v142, v142, v153"]
    def rg_write():
        A.ds("ds_write_b32 v154, v142"); T["rgw"] = A.ds(f"ds_write_b32 v154, v{z} offset:256")
    def rg_read(i):
        def f():
            if i == 0: A.wait(lg=T["rgw"])
            for q in range(4):
                dst = [32, 48, GV][i] + 4 * q
                T["rg"] = A.ds(f"ds_read_b128 v[{dst}:{dst+3}], v{[143, 144, 143][i]} offset:{(256 if i == 2 else 0) + 16*q}")
        return f
    G1 += [rg_write, f"s_lshr_b32 s{sT3}, s{sW}, 1\ns_lshl_b32 s{sT3}, s{sT3}, 7\ns_add_u32 s{sT2}, s{sT2}, s{sT3}\nv_lshrrev_b32 v143, 5, v0", f"v_lshl_add_u32 v143, v143, 6, s{sT2}", "v_xor_b32 v144, 128, v143",
           rg_read(0), rg_read(1), rg_read(2)]
    F += XL
    k = 0
    while F:
        fill(1); k += 1
        if k % 5 == 0: A.force_q(1, 1)
    for n in range(44):
        j, ks = n >> 2, n & 3
        if n == 0: A.wait(vm=T["u1st"]); flag_store(WS_F1); stamp("F1 stored", 5)
        if n == FST: A.wait(vm=T["hs"]); flag_store(WS_FS); stamp("FS stored", 5)
        if n == F1S - 1: T["f1"] = flag_load(WS_F1)
        if n == FSS - 1: T["fs"] = flag_load(WS_FS)
        if n == F1S:
            flag_wait(T["f1"], WS_F1, "f1"); stamp("F1 seen", 5)
            for k in range(16, min(n + HD, 28)): h_item(k)
            A.force_q(0, 4)
            gz_load()
        if n == F1S + 5: F.extend(G1)
        if n == FSS:
            flag_wait(T["fs"], WS_FS, "fs"); stamp("FS seen", 6)
            for k in range(28, n + HD): h_item(k)
            A.force_q(0, 4)
        if n == 28:
            assert not F
            A.wait(vm=T["xv"], lg=T["rg"])
            for b in range(4):
                for v in range(16):
                    e(f"v_mul_f32 v{ACC2+16*b+v}, v{ACC2+16*b+v}, v{(32 if b < 2 else 48)+v}")
                A.force_q(0, 1)
            for v in range(16): e(f"v_dot2c_f32_bf16 v{ACC2+v}, v{XV+v}, v152")
        A.wait(vm=A.token(f"H{n}"), lg=(w2r_last[j] if j < 3 else wft[n]))
        if n in (0, 4, 12, 16): stamp(f"s2_{n}", 5)
        if n in (20, 24, 28, 32, 38, 43): stamp(f"s2_{n}", 6)
        for b in ((0, 1, 2, 3) if n != 28 else (3, 2, 1, 0)):
            bt, bd = b >> 1, b & 1
            h = HB + 8 * (n % HD) + 4 * bt; acc = ACC2 + 16 * b
            t = WRL[j][2 * ks + bd] if j < 3 else WF[n % 3] + 4 * bd
            e(f"v_mfma_f32_32x32x16_bf16 v[{acc}:{acc+15}], a[{h}:{h+3}], a[{t}:{t+3}], " + ("0" if n == 0 else f"v[{acc}:{acc+15}]"))
            if b == 0 and ks == 3 and 3 <= j <= 6: A.push(f"R{j+4}", ring_item(j + 4))
            if b == 0 and n + 2 < 44: w_reads(n + 2)
            if b in (0, 2): A.force_q(0, 1 if len(A.q[0]) <= 2 else 2)
            if b == 1 or (b == 3 and not A.q[0]): A.force_q(1, 1)
            fill(3)
        k = n + HD
        if k < 44 and (k < 16 or (k < 28 and n >= F1S) or n >= FSS): h_item(k)
    assert not A.q[0] and not A.q[1]
    RO = {1: PA, 2: PA + 4096, 3: PB}
    e(f"s_add_u32 s{sT0}, s{sM0}, 65536\nv_add_u32 v1, s{sT0}, v31")
    e("v_xor_b32 v3, 0x4000, v1\nv_xor_b32 v4, 0x8000, v1\nv_xor_b32 v5, 0xc000, v1")
    e(f"v_lshrrev_b32 v6, 5, v0\nv_lshlrev_b32 v6, 15, v6\nv_and_b32 v7, 31, v0\nv_lshl_add_u32 v6, v7, 2, v6\ns_lshl_b32 s{sXB}, s{sXB}, 1")
    for b in (1, 2, 3):
        for q in range(4):
            r = ACC2 + 16 * b + 4 * q
            A.ds(f"ds_write_b128 v1, v[{r}:{r+3}] offset:{RO[b] - 65536 + q*1024}")
    A.wait(lg=A.lg)
    e("s_barrier")
    rt = {}
    for q in range(4):
        for b in (1, 2, 3):
            r = 128 + 16 * (b - 1) + 4 * q
            rt[(q, b)] = A.ds(f"ds_read_b128 v[{r}:{r+3}], v{2+b} offset:{RO[b] - 65536 + q*1024}")
    for q in range(4):
        A.wait(lg=rt[(q, 3)])
        for i in range(4):
            v = 4 * q + i
            e(f"v_add_f32 v{128+v}, v{128+v}, v{144+v}\nv_add_f32 v{ACC2+v}, v{ACC2+v}, v{160+v}\nv_add_f32 v{ACC2+v}, v{ACC2+v}, v{128+v}\nv_mul_f32 v{ACC2+v}, v{ACC2+v}, v{GV+v}")
            if v % 2 == 0 and v > 0: e(f"s_add_u32 s{sXB}, s{sXB}, 4096")
            A.L.append(f"buffer_store_dword v{ACC2+v}, v6, {OUT}, s{sXB} offen offset:{(v%2)*2048}" + ["", " sc1", " nt", " sc0 sc1"][OUTF])
    if stamps:
        e("s_waitcnt vmcnt(0)")
        stamp("end")
        e("s_memrealtime s[34:35]\ns_waitcnt lgkmcnt(0)")
        e(f"s_lshl_b32 s{sT0}, s2, 2\ns_add_u32 s{sT0}, s{sT0}, s{sW}\ns_lshl_b32 s{sT0}, s{sT0}, 6\ns_add_u32 s{sT0}, s{sT0}, {WS_STAMP:#x}\nv_mov_b32 v1, 0")
        for i, r in enumerate(used):
            e(f"s_sub_u32 s{sT1}, s{r}, s14\nv_mov_b32 v2, s{sT1}\nbuffer_store_dword v2, v1, {WS}, s{sT0} offen offset:{4*i}")
        e(f"v_mov_b32 v2, s34\nbuffer_store_dword v2, v1, {WS}, s{sT0} offen offset:60")
        e(f"s_andn2_b32 s100, s100, 1\nv_mov_b32 v2, s100\nbuffer_store_dword v2, v1, {WS}, s{sT0} offen offset:56")
    e("L_end:\ns_endpgm")
    body = A.text()
    hdr = HEADER + f"; @launch grid=(256,1,1) block=(256,1,1) lds={LDS_BYTES}\n"
    if stamps: hdr += "; STAMPS: " + " | ".join(stamp_names) + "\n"
    hdr += '.amdgcn_target "amdgcn-amd-amdhsa--gfx950"\n.text\n' + f".globl {KNAME}\n.p2align 8\n.type {KNAME},@function\n"
    tail = f""".section .rodata,"a"
.p2align 6
.amdhsa_kernel {KNAME}
  .amdhsa_next_free_vgpr 512
  .amdhsa_next_free_sgpr 102
  .amdhsa_accum_offset 256
  .amdhsa_group_segment_fixed_size 0
  .amdhsa_kernarg_size 128
  .amdhsa_user_sgpr_count 2
  .amdhsa_user_sgpr_kernarg_segment_ptr 1
  .amdhsa_system_sgpr_workgroup_id_x 1
.end_amdhsa_kernel
"""
    return hdr + body + tail

if __name__ == "__main__":
    out = sys.argv[1] if len(sys.argv) > 1 else "k.s"
    kw = {}
    for a in sys.argv[2:]:
        k, v = a.split("="); kw[k] = int(v)
    open(out, "w").write(gen(**kw))
```

```python
import sys
from asmlib import Sched

KNAME = "gated_mix__ssm_conv_s5__dense_activation_relu__prompt_kernel"
HEADER = open("gated_mix__ssm_conv_s5__dense_activation_relu__prompt.s.ref").read().split("; Override")[0]

RT_PITCH = 44 * 4096
WS_F0, WS_F1, WS_FS = 0xB00000, 0xB20000, 0xB40000
WS_AGG, WS_GZ, WS_STAMP, WS_SIZE = 0xB60000, 0xB80000, 0xB90000, 0xBD0000
OOB = 0x40000000
L_MISC = 131072
L_EBUF = L_MISC
L_TRP  = L_MISC + 4096
L_RG   = L_MISC + 4096 + 18432
LDS_BYTES = L_RG + 2048
PA, PB, PC, PD = 65536, 65536 + 8192, 0, 32768
POS = {0: PA, 1: PB, 2: PA, 3: PB, 4: PC, 5: PD, 6: PA, 7: PB, 8: PC, 9: PD, 10: PA}
KSTR = 64 * 3584

def gen(stamps=0, SPIN=20000, CAD=64, BURST=3, HD=12, LB=3, DU=6, ROT=1,
        W0=28, W1S=34, F0S=40, MW=7, MB=1, MC=3, F0L=58, AGL=60, F1S=10, FST=5, FSS=19, TLB=0, TW=0, TB=0, H1=11, HP=8, UST=6, WSOFF=0, OUTF=0, DMAF=0, PF=2, EB=42, CADW=90, NF3=4):
    A = Sched(CAD, BURST); e = A.e
    sW, sRB, sCB, sM2, sN2, sKB, sXCD, sN0, sN1 = 3, 4, 5, 6, 7, 8, 9, 10, 11
    NN = "s[10:11]"
    X, W1, BRE, BIM, W2, CRE, CIM, WS, OUT, AGG = [f"s[{b}:{b+3}]" for b in range(48, 88, 4)]
    sXB, sWB, sM0, sKC, sT0, sT1, sT2, sT3, sH0, sH1, sCNT, sP = 88, 89, 90, 91, 92, 93, 94, 95, 96, 97, 98, 99
    sB0, sB1, sU0, sU1 = 12, 13, 42, 43
    sUN = [34, 35, 36, 37, 38, 39, 47]
    sM8 = 46
    sUM, sUB, sUS = 20, 21, 30
    U1S = "s[24:27]"
    stamp_regs = [0, 16, 18, 22, 28, 40]
    stamp_names = []; pend = []
    def stamp(name, sset=1):
        if stamps and (sset == 1 or sset == stamps):
            i = len(stamp_names); r = stamp_regs[i % len(stamp_regs)] if i >= 2 else stamp_regs[i]
            if i >= len(stamp_regs): A.L.append(f"v_writelane_b32 v255, s{r}, {i - len(stamp_regs)}")
            stamp_names.append(name)
            A.L.append(f"s_memtime s[{r}:{r+1}]")
    def srd(base, ptr, size):
        e(f"s_mov_b32 s{base}, s{ptr}\ns_mov_b32 s{base+1}, s{ptr+1}\ns_mov_b32 s{base+2}, {size:#x}\ns_mov_b32 s{base+3}, 0x20000")
    class NoBG:
        def __enter__(s): A.off += 1
        def __exit__(s, *a): A.off -= 1
    nobg = NoBG()
    F = []
    def fill(k):
        while k > 0 and F:
            p = F.pop(0)
            if callable(p): p()
            else: e(p)
            k -= 1

    e(f"{KNAME}:")
    e("s_cmp_ge_u32 s2, 256\ns_cbranch_scc1 L_end")
    e("s_load_dwordx16 s[16:31], s[0:1], 0")
    e("s_load_dwordx16 s[32:47], s[0:1], 64")
    e("s_memrealtime s[100:101]")
    if stamps: e("s_memtime s[14:15]")
    e("v_lshrrev_b32 v1, 6, v0")
    e("v_and_b32 v0, 63, v0")
    e(f"v_readfirstlane_b32 s{sW}, v1")
    e(f"s_and_b32 s{sXCD}, s2, 7\ns_lshr_b32 s{sT1}, s2, 3")
    e(f"s_and_b32 s{sN2}, s{sT1}, 7\ns_lshr_b32 s{sT2}, s{sT1}, 3")
    e(f"s_and_b32 s{sRB}, s{sXCD}, 1\ns_lshl_b32 s{sRB}, s{sRB}, 3\ns_add_u32 s{sRB}, s{sRB}, s{sN2}")
    e(f"s_lshr_b32 s{sT0}, s{sXCD}, 1\ns_lshl_b32 s{sCB}, s{sT0}, 2\ns_add_u32 s{sCB}, s{sCB}, s{sT2}")
    e(f"s_lshl_b32 s{sM2}, s{sXCD}, 2\ns_add_u32 s{sM2}, s{sM2}, s{sT2}")
    e(f"s_mul_i32 s{sT0}, s{sT0}, 7\ns_lshl_b32 s{sH1}, s{sT2}, 1\ns_add_u32 s{sH1}, s{sH1}, s{sT0}")
    e(f"s_lshl_b32 s{sXB}, s{sRB}, 2\ns_add_u32 s{sXB}, s{sXB}, s{sW}\ns_lshl_b32 s{sXB}, s{sXB}, 15")
    e(f"s_lshl_b32 s{sM0}, s{sW}, 14\ns_lshl_b32 s{sP}, s{sW}, 11\ns_lshl_b32 s{sT0}, s{sH1}, 7\ns_mul_i32 s{sWB}, s{sW}, {16*3584}\ns_add_u32 s{sWB}, s{sWB}, s{sT0}")
    e("v_lshrrev_b32 v1, 4, v0\nv_and_b32 v12, 7, v0\nv_xor_b32 v2, v12, v1\nv_lshlrev_b32 v2, 4, v2")
    e("v_lshrrev_b32 v3, 5, v0\nv_lshlrev_b32 v3, 14, v3")
    e("v_bfe_u32 v4, v0, 3, 2\nv_lshl_add_u32 v3, v4, 10, v3")
    e("v_add_u32 v4, v3, v2\nv_xor_b32 v8, 64, v2\nv_add_u32 v5, v3, v8\nv_add_u32 v5, 3072, v5")
    e("v_add_u32 v6, 6144, v4\nv_add_u32 v7, 6144, v5")
    e("v_lshrrev_b32 v30, 3, v0\nv_mul_u32_u24 v9, 3584, v30\nv_and_b32 v1, 1, v1\nv_lshlrev_b32 v1, 2, v1\nv_xor_b32 v12, v12, v1\nv_lshl_add_u32 v9, v12, 4, v9")
    e(f"v_add_u32 v10, {8*3584-1024}, v9")
    e(f"s_mov_b32 s{sKC}, " + (f"s{sXCD}" if ROT else "0") + f"\ns_mov_b32 s50, {2048*1024:#x}\ns_mov_b32 s51, 0x20000\ns_mov_b32 s54, {512*3584:#x}\ns_mov_b32 s55, 0x20000")
    e("s_waitcnt lgkmcnt(0)")
    e("s_mov_b32 s48, s16\ns_mov_b32 s49, s17\ns_mov_b32 s52, s36\ns_mov_b32 s53, s37")
    late_out = True

    def dman(setup, vb, srdn, sreg, n=4):
        fns = []
        for i in range(n):
            def f(i=i):
                if i == 0: e(setup)
                return A.vmem(f"buffer_load_dwordx4 v{vb+i}, {srdn}, s{sreg} offen offset:{i*1024} " + ["", "nt ", "sc1 "][DMAF] + "lds")
            fns.append(f)
        return fns
    def adv(r): return f"\ns_add_u32 s{r}, s{r}, 1\ns_and_b32 s{r}, s{r}, 7"
    sKU = 34
    def x_item(c):
        sx = (f"s_lshl_b32 s{sB0}, s{sKC}, 7\ns_add_u32 s{sB0}, s{sB0}, s{sXB}" + adv(sKC)) if ROT else f"s_add_u32 s{sB0}, s{sXB}, {c*128}"
        return dman(f"s_add_u32 m0, s{sM0}, {65536 + (c&3)*4096}\n" + sx, 4, X, sB0)
    def u0_item(c):
        su = (f"s_add_u32 s{sB1}, s{sXCD}, {c}\ns_and_b32 s{sB1}, s{sB1}, 7\ns_mul_i32 s{sB1}, s{sB1}, {KSTR}\ns_add_u32 s{sB1}, s{sB1}, s{sWB}") if ROT else f"s_add_u32 s{sB1}, s{sWB}, {c*KSTR}"
        return dman(f"s_add_u32 m0, s{sP}, {c*8192}\n" + su, 9, W1, sB1, 2)
    def xu_item(c): return x_item(c) + u0_item(c)
    def w_item(q):
        c = q & 7
        if q < 16:
            sb = (f"s_lshl_b32 s{sB0}, s{sKB}, 7\ns_add_u32 s{sB0}, s{sB0}, s{sUB}" + adv(sKB)) if ROT else f"s_add_u32 s{sB0}, s{sUB}, {c*128}"
            return dman(f"s_add_u32 m0, s{sUM}, {c*8192}\n" + sb, 8, BRE, sB0, 1) + dman(f"s_add_u32 m0, s{sUM}, {c*8192+4096}\ns_nop 0", 8, BIM, sB0, 1)
        pre = ""
        if q == 16:
            pre = f"s_lshl_b32 s{sUM}, s{sUM}, 1\ns_lshl_b32 s{sB0}, s{sW}, 5\ns_cmp_eq_u32 s{sUS}, 128\ns_cselect_b32 s{sUB}, s{sB0}, s{sWB}\n"
        if ROT: su = f"s_mul_i32 s{sB0}, s{sKB}, s{sUS}\ns_add_u32 s{sB0}, s{sB0}, s{sUB}" + adv(sKB)
        else: su = f"s_mov_b32 s{sB0}, s{sUB}\ns_add_u32 s{sUB}, s{sUB}, s{sUS}"
        return dman(pre + f"s_add_u32 m0, s{sUM}, {c*8192}\n" + su, 11, U1S, sB0, 2)
    def ring_item(j):
        pos = POS[j]
        pre = ""
        if j == 0:
            pre = ("v_lshrrev_b32 v7, 3, v0\nv_lshlrev_b32 v7, 10, v7\nv_bfe_u32 v6, v0, 4, 1\nv_lshlrev_b32 v6, 2, v6\nv_and_b32 v5, 7, v0\nv_xor_b32 v6, v6, v5\nv_lshl_add_u32 v4, v6, 4, v7\n"
                   "v_add_u32 v5, 7168, v4\nv_add_u32 v6, 14336, v4\nv_add_u32 v7, 21504, v4\n")
        if j == 7:
            pre = ("v_lshrrev_b32 v11, 3, v0\nv_lshlrev_b32 v11, 10, v11\nv_lshrrev_b32 v10, 4, v0\nv_and_b32 v9, 7, v0\nv_xor_b32 v10, v10, v9\nv_lshl_add_u32 v8, v10, 4, v11\n"
                   "v_xor_b32 v9, 64, v8\nv_add_u32 v9, 7168, v9\nv_add_u32 v10, 14336, v8\nv_add_u32 v11, 14336, v9\n")
        if j < 7:
            s0 = f"s_lshl_b32 s{sB0}, s{sUN[j]}, 4\ns_lshl_b32 s{sB1}, s{sN2}, 7\ns_add_u32 s{sB0}, s{sB0}, s{sB1}"
            srdn = W2; vb = 4
        else:
            jj = j - 7
            s0 = f"s_lshl_b32 s{sB0}, s{sW}, 8\ns_lshl_b32 s{sB1}, s{sN2}, 16\ns_add_u32 s{sB0}, s{sB0}, s{sB1}"
            if jj >> 1: s0 += f"\ns_add_u32 s{sB0}, s{sB0}, 128"
            srdn = CIM if jj & 1 else CRE; vb = 8
        sm = sM0 if pos >= 65536 else sM8
        return (dman(pre + f"s_add_u32 m0, s{sm}, {pos}\n" + s0, vb, srdn, sB0)
              + dman(f"s_add_u32 m0, s{sm}, {pos+4096}\ns_add_u32 s{sB0}, s{sB0}, 32768", vb, srdn, sB0))

    stamp("karg")
    A.push("c0", xu_item(0)); A.push("c1", xu_item(1)); A.force(12)
    stamp("c1 issued")
    e(f"v_and_b32 v29, 31, v0\nv_lshl_add_u32 v3, s{sCB}, 5, v29\nv_lshlrev_b32 v3, 1, v3")
    tp0 = A.vmem("global_load_ushort v142, v3, s[18:19]", heavy=False)
    tp1 = A.vmem("global_load_ushort v143, v3, s[20:21]", heavy=False)
    tp2 = A.vmem("global_load_ushort v144, v3, s[30:31]", heavy=False)
    with nobg:
        e(f"s_or_b32 s100, s100, 1\ns_or_b32 s{sT0}, s2, s{sW}\ns_cmp_lg_u32 s{sT0}, 0\ns_cbranch_scc1 L_nononce")
        e("v_mov_b32 v1, s100\nv_mov_b32 v3, 0\ns_mov_b64 exec, 1")
        e("global_store_dword v3, v1, s[44:45] sc1")
        e("s_mov_b64 exec, -1")
        e("L_nononce:")
    XA, BA, UA, TAhi, VO1, FT, VZ, TAlo = 13, 17, 21, 23, 25, 26, 28, 29
    e(f"s_lshl_b32 s{sT0}, s{sW}, 13\ns_and_b32 s{sT1}, s{sW}, 1\ns_lshl_b32 s{sT1}, s{sT1}, 6\nv_xor_b32 v8, s{sT1}, v2\nv_lshl_add_u32 v8, v30, 10, v8\nv_add_u32 v8, s{sT0}, v8")
    e(f"s_lshl_b32 s{sUB}, s{sCB}, 15\ns_lshl_b32 s{sUM}, s{sW}, 10\ns_mov_b32 s{sKB}, " + (f"s{sXCD}" if ROT else "0"))
    e(f"v_and_b32 v1, 1, v30\nv_cmp_eq_u32 vcc, v1, v12\nv_and_b32 v1, 6, v30\nv_lshlrev_b32 v1, 1, v1\nv_mov_b32 v3, {OOB:#x}\nv_cndmask_b32 v1, v3, v1, vcc")
    e(f"s_cmp_eq_u32 s{sT2}, 3\ns_cselect_b64 vcc, -1, 0\nv_add_u32 v11, 128, v9\nv_add_u32 v12, 128, v10\nv_add_u32 v3, 1024, v1\nv_add_u32 v1, 16, v1\nv_cndmask_b32 v11, v11, v3, vcc\nv_cndmask_b32 v12, v12, v1, vcc")
    e("s_sub_u32 s40, s40, 1024\ns_subb_u32 s41, s41, 0")
    if TLB:
        e("v_mov_b32 v3, 0\ns_mov_b64 exec, 1")
        for p in (22, 24, 38, 26, 28, 46, 42): A.vmem(f"global_load_dword v241, v3, s[{p}:{p+1}]", heavy=False)
        e("s_mov_b64 exec, -1")
    def mw(part):
        tab, lanes, last = {0: ([(0, 48), (512, 52)], 32, 960), 1: ([(0, 56), (256, 60), (512, 68), (768, 72)], 16, 1024), 2: ([(0, 64)], 16, 896)}[part]
        with nobg:
            e(f"s_lshl_b32 s{sT0}, s2, 2\ns_add_u32 s{sT0}, s{sT0}, s{sW}\ns_cmp_ge_u32 s{sT0}, {last}\ns_cbranch_scc1 L_nomw{part}")
            e(f"s_mov_b64 s[100:101], s[{tab[0][1]}:{tab[0][1]+1}]" if False else f"s_mov_b32 s{sMA}, s{tab[0][1]}\ns_mov_b32 s{sMA+1}, s{tab[0][1]+1}\ns_mov_b32 s{sT1}, s{sT0}")
            for lo, p in tab[1:]:
                e(f"s_sub_u32 s{sCNT}, s{sT0}, {lo}\ns_cmp_ge_u32 s{sT0}, {lo}\ns_cselect_b32 s{sMA}, s{p}, s{sMA}\ns_cselect_b32 s{sMA+1}, s{p+1}, s{sMA+1}\ns_cselect_b32 s{sT1}, s{sCNT}, s{sT1}")
            e(f"s_mul_i32 s{sT1}, s{sT1}, {lanes*128}\nv_lshl_add_u32 v242, v0, 7, s{sT1}\ns_mov_b64 exec, {(1 << lanes) - 1:#x}" if lanes == 16 else f"s_mul_i32 s{sT1}, s{sT1}, {lanes*128}\nv_lshl_add_u32 v242, v0, 7, s{sT1}\ns_mov_b32 exec_hi, 0")
            e(f"global_load_dword v241, v242, s[{sMA}:{sMA+1}]\ns_mov_b64 exec, -1\nL_nomw{part}:")
    sMA = 42
    srd(80, 42, 2048 * 2048)
    if MW & 1: mw(0)
    A.push("c2", xu_item(2)); A.push("c3", xu_item(3))
    for c in range(4, 8): A.push(f"u{c}", u0_item(c))
    A.next_bg = A.t
    srd(56, 22, 512 * 1024); srd(60, 24, 512 * 1024); srd(68, 26, 512 * 1024); srd(72, 28, 512 * 1024)
    e(f"s_mov_b32 s{sUS}, {KSTR}\ns_mov_b32 s{sT3}, 4096\ns_cmp_eq_u32 s{sT2}, 3\ns_cselect_b32 s24, s40, s36\ns_cselect_b32 s25, s41, s37\ns_cselect_b32 s26, 0x800, s54\ns_mov_b32 s27, 0x20000\ns_cselect_b32 s{sUS}, 128, s{sUS}\ns_cselect_b32 s{sT3}, {OOB:#x}, s{sT3}")
    if WSOFF: e(f"s_add_u32 s46, s46, {WSOFF << 20:#x}\ns_addc_u32 s47, s47, 0")
    srd(64, 38, 1792 * 1024); srd(76, 46, WS_SIZE)
    e("v_lshlrev_b32 v31, 4, v0")
    e(f"v_add_u32 v{VO1}, s{sT3}, v31")
    e("v_lshrrev_b32 v1, 5, v0\nv_bfe_u32 v2, v0, 1, 3\nv_xor_b32 v2, v2, v1\nv_lshlrev_b32 v2, 4, v2")
    e(f"v_lshl_add_u32 v{BA}, v29, 7, v2\nv_xor_b32 v{BA+1}, 32, v{BA}\nv_xor_b32 v{BA+2}, 64, v{BA}\nv_xor_b32 v{BA+3}, 96, v{BA}")
    e(f"s_add_u32 s{sT0}, s{sM0}, 65536\n" + "\n".join(f"v_add_u32 v{XA+s}, s{sT0}, v{BA+s}" for s in range(4)))
    e("v_bfe_u32 v2, v0, 2, 2\nv_lshl_add_u32 v3, v1, 3, v2\nv_lshl_add_u32 v1, v1, 2, v2\nv_bfe_u32 v2, v0, 3, 1\nv_lshlrev_b32 v2, 6, v2")
    e(f"v_bfe_u32 v{UA}, v0, 4, 1\nv_lshl_add_u32 v2, v{UA}, 5, v2\nv_and_b32 v{UA}, 3, v0\nv_lshl_add_u32 v2, v{UA}, 3, v2")
    e(f"v_lshl_add_u32 v{UA}, v3, 7, v2\nv_xor_b32 v{UA+1}, 64, v{UA}")
    e(f"s_and_b32 s{sT0}, s{sW}, 1\ns_lshl_b32 s{sT0}, s{sT0}, 6\nv_lshl_add_u32 v1, v1, 7, v2\nv_xor_b32 v1, s{sT0}, v1\ns_lshl_b32 s{sT1}, s{sW}, 13\nv_add_u32 v{TAlo}, s{sT1}, v1\nv_xor_b32 v{TAlo+1}, 64, v{TAlo}")
    e(f"s_add_u32 s{sT1}, s{sT1}, 0x10000\nv_add_u32 v{TAhi}, s{sT1}, v{TAlo}\nv_add_u32 v{TAhi+1}, s{sT1}, v{TAlo+1}")
    e(f"s_lshl_b32 s{sT0}, s{sW}, 9\ns_add_u32 s{sT0}, s{sT0}, {L_EBUF}\nv_lshl_add_u32 v1, v0, 3, s{sT0}\nv_mov_b32 v2, 0\nv_mov_b32 v3, 0")
    A.ds("ds_write_b64 v1, v[2:3]")
    SC = [f"s_lshl_b32 s{sT0}, s{sCB}, 13\ns_sub_u32 s{sT1}, 16, s{sRB}\ns_lshl_b32 s{sT1}, s{sT1}, 9\ns_add_u32 s{sT0}, s{sT0}, s{sT1}\ns_add_u32 s{sT0}, s{sT0}, {WS_AGG:#x}\ns_add_u32 s84, s46, s{sT0}\ns_addc_u32 s85, s47, 0",
          f"s_lshl_b32 s86, s{sRB}, 9\ns_mov_b32 s87, 0x20000\ns_mul_i32 s{sT3}, s{sW}, 7"]
    for j in range(4):
        SC.append(f"s_add_u32 s{sT0}, s{sXCD}, {j}\ns_and_b32 s{sT0}, s{sT0}, 3\ns_lshl_b32 s{sT0}, s{sT0}, 1\ns_add_u32 s{sT0}, s{sT0}, s{sT3}\ns_lshl_b32 s{sUN[j]}, s{sT0}, 12")
    SC.append(f"s_mul_i32 s{sT1}, s{sXCD}, 43\ns_lshr_b32 s{sT1}, s{sT1}, 7\ns_mul_i32 s{sT1}, s{sT1}, 3\ns_sub_u32 s{sT1}, s{sXCD}, s{sT1}\ns_add_u32 s{sT3}, s{sT3}, 1")
    for j in range(4, 7):
        SC.append(f"s_lshl_b32 s{sT0}, s{sT1}, 1\ns_add_u32 s{sT0}, s{sT0}, s{sT3}\ns_lshl_b32 s{sUN[j]}, s{sT0}, 12" + (f"\ns_add_u32 s{sT1}, s{sT1}, 1\ns_cmp_eq_u32 s{sT1}, 3\ns_cselect_b32 s{sT1}, 0, s{sT1}" if j < 6 else ""))
    SC.append(f"s_lshr_b32 s{sT0}, s{sXB}, 15\ns_mul_i32 s{sH0}, s{sT0}, {RT_PITCH}\ns_lshl_b32 s{sH1}, s{sH1}, 12\ns_add_u32 s{sH1}, s{sH1}, s{sH0}")
    SC.append(f"s_lshl_b32 s{sM8}, s{sW}, 13")
    for p in SC: e(p)

    Lr, Li, L16r, L16i, PWr, PWi, L128r, L128i, L1Kr, L1Ki, C2r, C2i = range(128, 140)
    LOCr, LOCi = 140, 141
    def csq(dr, di, sr, si):
        return [f"v_mul_f32 v{dr}, v{sr}, v{sr}", f"v_mul_f32 v{di}, v{sr}, v{si}", f"v_fma_f32 v{dr}, -v{si}, v{si}, v{dr}", f"v_add_f32 v{di}, v{di}, v{di}"]
    def cmul_l(dr, di, ar, ai, br, bi):
        return [f"v_mul_f32 v{dr}, v{ar}, v{br}", f"v_mul_f32 v{di}, v{ar}, v{bi}", f"v_fma_f32 v{dr}, -v{ai}, v{bi}, v{dr}", f"v_fmac_f32 v{di}, v{ai}, v{br}"]
    def cfma_l(dr, di, lr, li, sr, si, ar, ai):
        return [f"v_fma_f32 v{dr}, v{lr}, v{sr}, v{ar}", f"v_fma_f32 v{di}, v{lr}, v{si}, v{ai}", f"v_fma_f32 v{dr}, -v{li}, v{si}, v{dr}", f"v_fmac_f32 v{di}, v{li}, v{sr}"]
    P = [lambda: A.wait(vm=tp2)] + f"""v_lshlrev_b32 v142, 16, v142
v_lshlrev_b32 v143, 16, v143
v_lshlrev_b32 v144, 16, v144
v_mul_f32 v144, 0x3fb8aa3b, v144
v_exp_f32 v144, v144
v_cvt_pk_bf16_f32 v144, v144, v144
v_lshlrev_b32 v144, 16, v144
v_mul_f32 v145, v144, v142
v_mul_f32 v146, v144, v143
v_mul_f32 v145, 0x3fb8aa3b, v145
v_exp_f32 v145, v145
v_mul_f32 v146, 0.15915494, v146
v_rndne_f32 v147, v146
v_sub_f32 v146, v146, v147
v_cos_f32 v147, v146
v_sin_f32 v148, v146
v_mul_f32 v{Lr}, v145, v147
v_mul_f32 v{Li}, v145, v148
v_add_f32 v144, -1.0, v{Lr}
v_mul_f32 v145, v142, v142
v_fmac_f32 v145, v143, v143
v_rcp_f32 v145, v145
v_mul_f32 v146, v144, v142
v_add_f32 v145, v145, v145
v_fmac_f32 v146, v{Li}, v143
v_mul_f32 v{C2r}, v146, v145
v_mul_f32 v147, v{Li}, v142
v_fma_f32 v147, -v144, v143, v147
v_mul_f32 v{C2i}, v147, v145""".split("\n")
    P += csq(142, 143, Lr, Li) + csq(144, 145, 142, 143) + csq(142, 143, 144, 145) + csq(L16r, L16i, 142, 143)
    P += csq(142, 143, L16r, L16i) + ["v_cmp_lt_u32 vcc, 31, v0", f"v_cndmask_b32 v146, 1.0, v{L16r}, vcc", f"v_cndmask_b32 v147, 0, v{L16i}, vcc"]
    P += csq(144, 145, 142, 143) + [f"s_bitcmp1_b32 s{sW}, 0\ns_cselect_b64 vcc, -1, 0", "v_cndmask_b32 v142, 1.0, v142, vcc", "v_cndmask_b32 v143, 0, v143, vcc"]
    P += cmul_l(148, 149, 146, 147, 142, 143) + csq(L128r, L128i, 144, 145)
    P += [f"s_bitcmp1_b32 s{sW}, 1\ns_cselect_b64 vcc, -1, 0", "v_cndmask_b32 v144, 1.0, v144, vcc", "v_cndmask_b32 v145, 0, v145, vcc"]
    P += cmul_l(PWr, PWi, 148, 149, 144, 145)
    P += csq(142, 143, L128r, L128i) + csq(144, 145, 142, 143) + csq(L1Kr, L1Ki, 144, 145)
    EA, GA, FA, AGA, AGE = 150, 151, 156, 158, 159
    P += [f"s_lshl_b32 s{sT2}, s{sW}, 9\ns_add_u32 s{sT2}, s{sT2}, {L_EBUF}\nv_lshrrev_b32 v1, 5, v0", "v_and_b32 v2, 31, v0", f"v_lshlrev_b32 v{GA}, 4, v2", f"v_lshl_add_u32 v{AGA}, v1, 12, v{GA}",
          f"v_lshlrev_b32 v{AGE}, 3, v1", f"v_sub_u32 v{AGE}, s{sRB}, v{AGE}", f"v_med3_i32 v{AGE}, v{AGE}, 0, 8",
          "v_lshlrev_b32 v1, 8, v1", "v_lshl_add_u32 v1, v2, 3, v1", f"v_add_u32 v{EA}, s{sT2}, v1",
          "v_bfe_u32 v2, v0, 2, 1", "v_lshlrev_b32 v2, 4, v2", "v_and_b32 v3, 3, v0", "v_add_u32 v1, v2, v3",
          f"s_lshl_b32 s{sT2}, s{sM2}, 5\ns_lshl_b32 s{sT3}, s{sW}, 2\ns_add_u32 s{sT2}, s{sT2}, s{sT3}\nv_add_u32 v2, s{sT2}, v1", f"v_lshlrev_b32 v{FA}, 7, v2",
          "v_bfe_u32 v2, v0, 3, 2", "v_lshl_add_u32 v1, v2, 2, v1", "v_lshlrev_b32 v157, 2, v1"]

    TWS = [20, 26, 33, 41, 49, 57, 65, 73, 80, 86, 92]
    XF = 0; UT = 128; BFA = 160
    ACR, ACI, AU0, AU1 = 32, 48, 64, 96
    WRL = {0: [192 + 4 * i for i in range(8)], 1: [224 + 4 * i for i in range(8)], 2: [160 + 4 * i for i in range(8)], 3: [192 + 4 * i for i in range(8)]}
    WRK = {0: 'a', 1: 'a', 2: 'a', 3: 'v'}
    T = {}; rtok = {}; w2r_last = {}
    def reads(g):
        st, m = g >> 1, g & 1
        ps, u = st >> 5, st & 31
        c, s = u >> 2, u & 3
        if ps == 1:
            b = BFA + 8 * (u & 3) + 4 * m
            rtok[g] = A.ds(f"ds_read_b128 a[{b}:{b+3}], v{BA+s} offset:{c*8192 + m*4096}")
        else:
            if ps == 0 and m == 0:
                r = XF + 4 * u
                A.ds(f"ds_read_b128 a[{r}:{r+3}], v{XA+s} offset:{(c & 3) * 4096}")
            t = UT + 4 * (g % 8); off = c * 8192 + 16 * s * 128
            A.ds(f"ds_read_b64_tr_b16 a[{t}:{t+1}], v{UA+m} offset:{off}")
            rtok[g] = A.ds(f"ds_read_b64_tr_b16 a[{t+2}:{t+3}], v{UA+m} offset:{off + 512}")
    def w2r_piece(j, k):
        ks, dts = k >> 1, k & 1
        pos = POS[j]; hi = pos >= 65536; off = pos & 0xffff
        if k == 0: A.wait(vm=A.token(f"R{j}"))
        t = WRL[j][k]; ar = (TAhi if hi else TAlo) + dts
        A.ds(f"ds_read_b64_tr_b16 {WRK[j]}[{t}:{t+1}], v{ar} offset:{off + 16*ks*128}")
        w2r_last[j] = A.ds(f"ds_read_b64_tr_b16 {WRK[j]}[{t+2}:{t+3}], v{ar} offset:{off + (16*ks+8)*128}")
    sFL = 31
    def flag_store(base):
        with nobg:
            e(f"s_add_u32 s{sT0}, s{sFL}, {base:#x}\ns_mov_b64 exec, 1")
            A.vmem(f"buffer_store_dwordx2 v[{FT}:{FT+1}], off, {WS}, s{sT0} sc1", heavy=False)
            e("s_mov_b64 exec, -1")
    def nonce_get():
        A.wait(vm=T["nonce"])
        with nobg:
            e(f"v_readfirstlane_b32 s{sN0}, v{VZ}\ns_cmp_lg_u32 s{sN0}, 0\ns_cbranch_scc1 L_nonce_ok")
            e(f"s_mov_b32 s{sCNT}, {SPIN}\nv_mov_b32 v{FT}, 0\nL_nonce_loop:\ns_sleep 2\nglobal_load_dword v{VZ}, v{FT}, s[44:45] sc1\ns_waitcnt vmcnt(0)")
            e(f"v_readfirstlane_b32 s{sN0}, v{VZ}\ns_cmp_lg_u32 s{sN0}, 0\ns_cbranch_scc1 L_nonce_ok")
            e(f"s_sub_u32 s{sCNT}, s{sCNT}, 1\ns_cmp_lg_u32 s{sCNT}, 0\ns_cbranch_scc1 L_nonce_loop\nL_nonce_ok:")
        e(f"s_not_b32 s{sN1}, s{sN0}\nv_mov_b32 v{FT}, s{sN0}\nv_mov_b32 v154, s{sN0}\nv_mov_b32 v{FT+1}, s{sN1}\nv_mov_b32 v155, s{sN1}")
        e(f"s_lshr_b32 s{sFL}, s{sXB}, 11\ns_add_u32 s{sFL}, s{sFL}, s{sCB}\ns_lshl_b32 s{sFL}, s{sFL}, 7")
    def u_epi(acc, vaddr, key):
        L = []
        for k in range(4):
            a0 = acc + 8 * k
            L += [f"v_cvt_pk_bf16_f32 v{a0+i}, v{a0+2*i}, v{a0+2*i+1}" for i in range(4)]
            L += [f"v_pk_max_i16 v{a0+i}, v{a0+i}, 0" for i in range(4)]
            def st(a0=a0, k=k): T[key] = A.vmem(f"buffer_store_dwordx4 v[{a0}:{a0+3}], v{vaddr}, {WS}, s{sH1} offen offset:{k*1024} sc1")
            L.append(st)
        return L
    S1 = []
    pp = [(142, 143), (144, 145)]; cur = (ACR, ACI)
    for v in range(1, 16):
        d = pp[v & 1]; S1 += cfma_l(d[0], d[1], Lr, Li, cur[0], cur[1], ACR + v, ACI + v); cur = d
    Er, Ei = cur
    def e_write(): T["ew"] = A.ds(f"ds_write_b64 v{EA}, v[{Er}:{Ei}] offset:{7*256}")
    S1.append(e_write)
    def e_reads():
        for k in range(7): T["er"] = A.ds(f"ds_read_b64 v[{160+2*k}:{161+2*k}], v{EA} offset:{k*256}")
    BUS = []
    for v in range(16):
        BUS += [f"v_mul_f32 v1, v{C2i}, v{ACR+v}", f"v_mul_f32 v{ACR+v}, v{C2r}, v{ACR+v}", f"v_fma_f32 v{ACR+v}, -v{C2i}, v{ACI+v}, v{ACR+v}", f"v_fma_f32 v{ACI+v}, v{C2r}, v{ACI+v}, v1"]
    S2 = [e_reads] + BUS[:8] + [lambda: A.wait(lg=T["er"])]
    cur = (160, 161)
    for k in range(1, 7):
        d = [(LOCr, LOCi), (146, 147)][k & 1]
        S2 += cfma_l(d[0], d[1], L16r, L16i, cur[0], cur[1], 160 + 2 * k, 161 + 2 * k); cur = d
    S2 += cfma_l(152, 153, L16r, L16i, LOCr, LOCi, Er, Ei)
    def agg_store():
        with nobg:
            e(f"s_cmp_lg_u32 s{sW}, 3\ns_cbranch_scc1 L_noagg")
            e(f"s_lshl_b32 s{sT0}, s{sCB}, 4\ns_add_u32 s{sT0}, s{sT0}, 15\ns_sub_u32 s{sT0}, s{sT0}, s{sRB}\ns_lshl_b32 s{sT0}, s{sT0}, 9\ns_add_u32 s{sT0}, s{sT0}, {WS_AGG:#x}")
            e("s_mov_b32 exec_lo, 0")
            e(f"buffer_store_dwordx4 v[152:155], v{GA}, {WS}, s{sT0} offen sc1")
            e("s_mov_b64 exec, -1\nL_noagg:")
        stamp("agg published")
    S2 += [agg_store] + BUS[8:]
    def agg_loads(tracked=True):
        for k in range(8):
            s = f"buffer_load_dwordx4 v[{160+4*k}:{163+4*k}], v{AGA}, {AGG}, 0 offen offset:{k*512} sc1"
            if tracked: T["agt"] = A.vmem(s)
            else: e(s)
    def flag_load(base, tracked=True):
        with nobg:
            e(f"s_mov_b32 s{sT0}, {base:#x}\ns_mov_b64 exec, 0xff")
            s = f"buffer_load_dwordx2 v[148:149], v{FA}, {WS}, s{sT0} offen sc1"
            t = A.vmem(s, heavy=False) if tracked else e(s)
            e("s_mov_b64 exec, -1")
        return t
    def flag_check(lbl):
        e(f"v_cmp_ne_u64 vcc, {NN}, v[148:149]\ns_and_b32 s{sT0}, vcc_lo, 0xff\ns_cbranch_scc0 {lbl}")
    def flag_wait(tok, base, name):
        A.wait(vm=tok)
        with nobg:
            flag_check(f"L_{name}_ok")
            e(f"s_mov_b32 s{sCNT}, {SPIN}\nL_{name}_loop:\ns_sleep 1")
            flag_load(base, tracked=False)
            e("s_waitcnt vmcnt(0)")
            flag_check(f"L_{name}_ok")
            e(f"s_sub_u32 s{sCNT}, s{sCNT}, 1\ns_cmp_lg_u32 s{sCNT}, 0\ns_cbranch_scc1 L_{name}_loop\nL_{name}_ok:")

    e(f"s_lshr_b32 s{sT0}, s2, 6\ns_lshl_b32 s{sT0}, s{sT0}, 14\nv_and_b32 v240, 15, v0\nv_lshlrev_b32 v240, 10, v240\nv_add_u32 v240, s{sT0}, v240")
    def touch(srdn, vaddr, setup, mask="0xffff"):
        with nobg:
            e(setup + f"\ns_mov_b64 exec, {mask}")
            A.vmem(f"buffer_load_dword v241, v{vaddr}, {srdn}, s{sT0} offen", heavy=False)
            e("s_mov_b64 exec, -1")
    def w_touch(j):
        if j < 7: touch(W2, 240, f"s_lshl_b32 s{sT0}, s{sUN[j]}, 4\ns_lshl_b32 s{sT1}, s{sN2}, 7\ns_add_u32 s{sT0}, s{sT0}, s{sT1}")
        else:
            jj = j - 7
            touch(CIM if jj & 1 else CRE, 240, f"s_lshl_b32 s{sT0}, s{sW}, 8\ns_lshl_b32 s{sT1}, s{sN2}, 16\ns_add_u32 s{sT0}, s{sT0}, s{sT1}" + (f"\ns_add_u32 s{sT0}, s{sT0}, 128" if jj >> 1 else ""))
    def u1_touch():
        e(f"v_and_b32 v242, 15, v0\nv_mul_u32_u24 v242, 3584, v242\nv_sub_u32 v243, v{VO1}, v31\nv_and_b32 v243, {OOB:#x}, v243\nv_add_u32 v242, v242, v243")
        touch(W1, 242, f"s_mul_i32 s{sT0}, s{sN2}, {KSTR}\ns_add_u32 s{sT0}, s{sT0}, s{sWB}\ns_add_u32 s{sT0}, s{sT0}, 128")
    A.wait(vm=A.token("c0"), lg=A.lg)
    e("s_barrier")
    stamp("chunk0 landed")
    for g in range(DU): reads(g)
    F += P
    for g in range(192):
        st, m = g >> 1, g & 1
        ps, u = st >> 5, st & 31
        c, s = u >> 2, u & 3
        vs = st - 32
        if m == 0:
            if st % 4 == 0 and st > 0: stamp(f"t{st}")
            if st == 32:
                assert not F
                A.cad = CADW
                ue = u_epi(AU0, 31, "u0st")
                F += [p for p in ue if not callable(p)] + [nonce_get]; u0sts = [p for p in ue if callable(p)]
            if UST <= vs < UST + 4:
                A.token("w15"); u0sts[vs - UST]()
            if st == 64: F += S1
            if vs == EB:
                assert "ew" in T
                A.wait(lg=T["ew"]); e("s_barrier"); F += S2
            if vs == F0S: A.wait(vm=T["u0st"]); flag_store(WS_F0); stamp("F0 stored")
            if vs == F0L: T["f0"] = flag_load(WS_F0)
            if vs == AGL: agg_loads()
            for j, s0 in ((0, W0), (1, W1S)):
                if vs == s0 + 5:
                    A.wait(lg=w2r_last[j]); A.push(f"R{j+2}", ring_item(j + 2))
            A.wait(lg=rtok[g + 1])
            if ps == 0 and s == 3 and c + 4 < 8:
                A.token(f"c{c+3}"); A.push_front(f"c{c+4}", x_item(c + 4))
            if TW and st in TWS: w_touch(TWS.index(st))
            if TB and st == 12: u1_touch()
            if st == 31: A.push("R0", ring_item(0)); A.push("R1", ring_item(1))
        xr = XF + 4 * u
        if ps == 1:
            b = BFA + 8 * (u & 3) + 4 * m; acc = ACI if m else ACR
            e(f"v_mfma_f32_32x32x16_bf16 v[{acc}:{acc+15}], a[{xr}:{xr+3}], a[{b}:{b+3}], " + ("0" if u == 0 else f"v[{acc}:{acc+15}]"))
        else:
            t = UT + 4 * (g % 8); acc = (AU1 if ps else AU0) + 16 * m
            e(f"v_mfma_f32_32x32x16_bf16 v[{acc}:{acc+15}], a[{t}:{t+3}], a[{xr}:{xr+3}], " + ("0" if u == 0 else f"v[{acc}:{acc+15}]"))
        gn = g + DU
        if gn < 64 and gn % 8 == 0:
            cn = gn // 8
            A.wait(vm=max(A.token(f"c{cn}"), A.token(f"u{cn}") if cn >= 4 else 0))
            e("s_barrier")
            if cn >= 2: A.push(f"w{8+cn-2}", w_item(8 + cn - 2))
            if cn == MB and MW & 2: mw(1)
            if cn == MC and MW & 4: mw(2)
            if cn == 5:
                e(f"v_mov_b32 v{FT}, 0")
                T["nonce"] = A.vmem(f"global_load_dword v{VZ}, v{FT}, s[44:45] sc1", heavy=False)
        elif 64 <= gn < 192 and gn % 16 == 0:
            k = (gn - 64) // 16
            A.wait(vm=A.token(f"w{9+2*k}"))
            e("s_barrier")
            if 1 <= k and k + 2 <= 7:
                A.token(f"w{9+2*(k+1)}")
                A.push_front(f"w{9+2*(k+2)}", w_item(8 + 2 * (k + 2)) + w_item(9 + 2 * (k + 2)))
            if k == 7: A.push("R4", ring_item(4))
        if gn < 192: reads(gn)
        for j, s0 in ((0, W0), (1, W1S)):
            if s0 <= vs < s0 + 4: w2r_piece(j, 2 * (vs - s0) + m)
        if ps == 0: fill(PF if g >= 4 else 0)
        elif ps == 1: fill(3)
        else: fill(4 if vs < EB else (NF3 // 2 + (m if NF3 % 2 else 0)))
    stamp("pass3 done")
    A.off += 1
    fill(1000)
    e("s_barrier")
    A.push("R5", ring_item(5))
    sC0, sC1 = sKC, sWB
    e(f"s_lshr_b32 s{sT0}, s{sW}, 1\ns_lshl_b32 s{sT1}, s{sM2}, 1\ns_add_u32 s{sT0}, s{sT0}, s{sT1}\ns_mul_i32 s{sC0}, s{sT0}, {RT_PITCH}\ns_xor_b32 s{sT2}, s{sT0}, 1\ns_mul_i32 s{sC1}, s{sT2}, {RT_PITCH}\ns_lshl_b32 s{sP}, s{sT0}, 15")
    HB = 0; WF = [96, 104, 112, 120]; ACC2 = 64
    def h_item(n):
        j, ks = n >> 2, n & 3
        r = HB + 8 * (n % HD)
        def f0():
            if ks == 0:
                if j < 7: e(f"s_add_u32 s{sU0}, s{sUN[j]}, s{sC0}\ns_add_u32 s{sU1}, s{sUN[j]}, s{sC1}")
                else: e(f"s_lshl_b32 s{sU1}, s{sW}, 14\ns_add_u32 s{sU1}, s{sU1}, {(28 + j - 7) * 4096}\ns_add_u32 s{sU0}, s{sU1}, s{sC0}\ns_add_u32 s{sU1}, s{sU1}, s{sC1}")
            return A.vmem(f"buffer_load_dwordx4 a[{r}:{r+3}], v31, {WS}, s{sU0} offen offset:{ks*1024} sc1")
        def f1():
            return A.vmem(f"buffer_load_dwordx4 a[{r+4}:{r+7}], v31, {WS}, s{sU1} offen offset:{ks*1024} sc1")
        A.push(f"H{n}", [f0, f1], prio=0)
    e(f"v_add_f32 v{VZ}, v{AU1}, v{AU1+5}")
    F += u_epi(AU1, VO1, "u1st"); fill(1000)
    e(f"s_lshr_b32 s{sT0}, s{sXB}, 8\ns_lshr_b32 s{sT1}, s{sCB}, 2\ns_lshl_b32 s{sT1}, s{sT1}, 13\ns_add_u32 s{sT0}, s{sT0}, s{sT1}\ns_add_u32 s{sT0}, s{sT0}, {WS_GZ:#x}\ns_cmp_eq_u32 s{sUS}, 128\ns_cselect_b32 s{sT1}, 0, {OOB:#x}\nv_add_u32 v157, s{sT1}, v157\ns_mov_b32 exec_hi, 0")
    T["u1st"] = A.vmem(f"buffer_store_dword v{VZ}, v157, {WS}, s{sT0} offen sc1", heavy=False)
    e("s_mov_b64 exec, -1")
    flag_wait(T["f0"], WS_F0, "f0")
    stamp("F0 seen")
    for n in range(HD): h_item(n)
    A.force_q(0, 4)
    def cnt():
        e("v_mov_b32 v146, 0")
        for k in range(8): e(f"v_cmp_eq_u64 vcc, {NN}, v[{162+4*k}:{163+4*k}]\nv_addc_co_u32 v146, vcc, 0, v146, vcc")
        e(f"v_cmp_ne_u32 vcc, v146, v{AGE}\ns_cbranch_vccz L_ag_ok")
    A.wait(vm=T["agt"])
    cnt()
    e(f"s_mov_b32 s{sCNT}, {SPIN}\nL_ag_loop:\ns_sleep 1")
    agg_loads(False)
    e("s_waitcnt vmcnt(0)")
    cnt()
    e(f"s_sub_u32 s{sCNT}, s{sCNT}, 1\ns_cmp_lg_u32 s{sCNT}, 0\ns_cbranch_scc1 L_ag_loop\nL_ag_ok:")
    stamp("agg seen")
    AG1 = []
    cur = (160 + 28, 161 + 28)
    for k in range(6, -1, -1):
        d = [(142, 143), (144, 145)][k & 1]
        AG1 += cfma_l(d[0], d[1], L128r, L128i, cur[0], cur[1], 160 + 4 * k, 161 + 4 * k); cur = d
    AG1 += ["v_mov_b32 v144, v142", "v_mov_b32 v145, v143", f"s_mul_i32 s{sT2}, s{sW}, 4608\ns_add_u32 s{sT2}, s{sT2}, {L_TRP}\nv_and_b32 v152, 31, v0", "v_mul_u32_u24 v152, 72, v152",
            "v_permlane32_swap_b32 v142, v144", "v_permlane32_swap_b32 v143, v145", "v_lshrrev_b32 v2, 5, v0"]
    AG1 += cfma_l(146, 147, L1Kr, L1Ki, 144, 145, 142, 143) + cfma_l(142, 143, PWr, PWi, 146, 147, LOCr, LOCi) + cmul_l(144, 145, C2r, C2i, 142, 143)
    AG1 += ["v_lshl_add_u32 v152, v2, 3, v152", f"v_add_u32 v152, s{sT2}, v152"]
    cur = (144, 145)
    for v in range(16):
        AG1 += [f"v_fmac_f32 v{ACR+v}, v{Lr}, v{cur[0]}", f"v_fmac_f32 v{ACI+v}, v{Lr}, v{cur[1]}", f"v_fma_f32 v{ACR+v}, -v{Li}, v{cur[1]}, v{ACR+v}", f"v_fmac_f32 v{ACI+v}, v{Li}, v{cur[0]}"]
        cur = (ACR + v, ACI + v)
        if v % 4 == 3:
            q = v >> 2
            AG1 += [f"v_cvt_pk_bf16_f32 v{160+4*q}, v{ACR+4*q}, v{ACR+4*q+1}", f"v_cvt_pk_bf16_f32 v{161+4*q}, v{ACR+4*q+2}, v{ACR+4*q+3}",
                    f"v_cvt_pk_bf16_f32 v{162+4*q}, -v{ACI+4*q}, -v{ACI+4*q+1}", f"v_cvt_pk_bf16_f32 v{163+4*q}, -v{ACI+4*q+2}, -v{ACI+4*q+3}"]
            def tw(q=q):
                A.ds(f"ds_write_b64 v152, v[{160+4*q}:{161+4*q}] offset:{16*q}")
                T["tw"] = A.ds(f"ds_write_b64 v152, v[{162+4*q}:{163+4*q}] offset:{2304+16*q}")
            AG1.append(tw)
    AG1 += ["v_bfe_u32 v3, v0, 2, 2", "v_lshl_add_u32 v153, v2, 3, v3", "v_mul_u32_u24 v153, 72, v153", "v_bfe_u32 v3, v0, 4, 1", "v_lshl_add_u32 v153, v3, 5, v153", "v_and_b32 v3, 3, v0", "v_lshl_add_u32 v153, v3, 3, v153", f"v_add_u32 v153, s{sT2}, v153"]
    F += AG1
    k = 0
    while F:
        fill(1); k += 1
        if k % H1 == 0 and f"H{HP-1}" not in A.tok: A.force_q(0, 1)
    A.token(f"H{HP-1}")
    A.wait(vm=T["u1st"]); flag_store(WS_F1); stamp("F1 stored")
    A.wait(lg=T["tw"])
    for part in range(2):
        for kk in range(2):
            r = 176 + 8 * part + 4 * kk
            A.ds(f"ds_read_b64_tr_b16 v[{r}:{r+1}], v153 offset:{part*2304 + 16*kk*72}")
            T[("tr", part, kk)] = A.ds(f"ds_read_b64_tr_b16 v[{r+2}:{r+3}], v153 offset:{part*2304 + (16*kk+4)*72}")
    e(f"s_lshr_b32 s{sT0}, s{sCB}, 1\ns_lshl_b32 s{sT0}, s{sT0}, 13\ns_and_b32 s{sT1}, s{sCB}, 1\ns_lshl_b32 s{sT1}, s{sT1}, 11\ns_add_u32 s{sT0}, s{sT0}, s{sT1}\ns_add_u32 s{sT0}, s{sT0}, s{sH0}\ns_add_u32 s{sT0}, s{sT0}, {28*4096}\ns_add_u32 s{sT1}, s{sT0}, 4096")
    for part in range(2):
        for kk in range(2):
            r = 176 + 8 * part + 4 * kk
            A.wait(lg=T[("tr", part, kk)])
            T["hs"] = A.vmem(f"buffer_store_dwordx4 v[{r}:{r+3}], v31, {WS}, s{sT1 if part else sT0} offen offset:{kk*1024} sc1")
    stamp("scan done")
    XV = 192; CA = 208; GV = 224
    XL = [f"s_and_b32 s{sT1}, s{sW}, 1\ns_lshl_b32 s{sT2}, s{sN2}, 1\ns_add_u32 s{sT1}, s{sT1}, s{sT2}\ns_lshl_b32 s{sT1}, s{sT1}, 6\ns_add_u32 s{sXB}, s{sP}, s{sT1}\nv_and_b32 v2, 31, v0\nv_lshl_add_u32 v151, v2, 1, s{sT1}",
          "v_lshrrev_b32 v1, 5, v0", "v_lshlrev_b32 v1, 14, v1", "v_lshl_add_u32 v150, v2, 1, v1",
          lambda: A.vmem("global_load_ushort v152, v151, s[32:33]", heavy=False)]
    for v in range(16):
        def xl(v=v):
            if v % 4 == 0: e(f"s_add_u32 s{sT3}, s{sXB}, {v*1024}")
            T["xv"] = A.vmem(f"buffer_load_ushort v{XV+v}, v150, {X}, s{sT3} offen offset:{(v%4)*1024}", heavy=False)
        XL.append(xl)
    XL.append(f"s_and_b32 s{sT2}, s{sW}, 1\ns_lshl_b32 s{sT2}, s{sT2}, 12\ns_add_u32 s{sT2}, s{sM8}, s{sT2}\ns_add_u32 s{sT3}, s{sM8}, 0x10000")
    for b in range(4):
        XL += [f"v_add_u32 v{CA+b}, s{sT2}, v{BA+b}", f"v_xor_b32 v{CA+4+b}, 0x1000, v{CA+b}", f"v_add_u32 v{CA+8+b}, s{sT3}, v{CA+b}", f"v_add_u32 v{CA+12+b}, s{sT3}, v{CA+4+b}"]
    wft = {}
    def w_reads(n):
        j, ks = n >> 2, n & 3
        if j < 2: return
        pos = POS[j]; hi = pos >= 65536; off = pos & 0xffff
        if ks == 0: A.wait(vm=A.token(f"R{j}"))
        for dts in range(2):
            t = WF[n % 4] + 4 * dts
            if j < 7:
                ar = (TAhi if hi else TAlo) + dts
                A.ds(f"ds_read_b64_tr_b16 a[{t}:{t+1}], v{ar} offset:{off + 16*ks*128}")
                wft[n] = A.ds(f"ds_read_b64_tr_b16 a[{t+2}:{t+3}], v{ar} offset:{off + (16*ks+8)*128}")
            else:
                ar = CA + (8 if hi else 0) + 4 * dts + ks
                wft[n] = A.ds(f"ds_read_b128 a[{t}:{t+3}], v{ar} offset:{off}")
    def gz_load():
        e(f"s_lshl_b32 s{sT0}, s{sM2}, 8\ns_lshl_b32 s{sT1}, s{sW}, 13\ns_add_u32 s{sT0}, s{sT0}, s{sT1}\ns_add_u32 s{sT0}, s{sT0}, {WS_GZ:#x}\nv_lshlrev_b32 v1, 2, v0")
        T["gz"] = A.vmem(f"buffer_load_dword v{VZ}, v1, {WS}, s{sT0} offen sc1", heavy=False)
    z = VZ
    G1 = [lambda: A.wait(vm=T["gz"]), f"v_cvt_pk_bf16_f32 v{z}, v{z}, v{z}", f"v_lshlrev_b32 v{z}, 16, v{z}", f"v_mul_f32 v{z}, 0xbfb8aa3b, v{z}", f"v_exp_f32 v{z}, v{z}", f"v_add_f32 v{z}, 1.0, v{z}", f"v_rcp_f32 v{z}, v{z}",
          f"v_cvt_pk_bf16_f32 v{z}, v{z}, v{z}", f"v_lshlrev_b32 v{z}, 16, v{z}", f"v_sub_f32 v142, 1.0, v{z}", "v_cvt_pk_bf16_f32 v142, v142, v142", "v_lshlrev_b32 v142, 16, v142",
          f"v_max_f32 v{z}, 0x21800000, v{z}", f"v_rcp_f32 v153, v{z}", f"s_lshl_b32 s{sT2}, s{sW}, 9\ns_add_u32 s{sT2}, s{sT2}, {L_RG}\nv_lshl_add_u32 v154, v0, 2, s{sT2}", "v_mul_f32 v142, v142, v153"]
    def rg_write():
        A.ds("ds_write_b32 v154, v142"); T["rgw"] = A.ds(f"ds_write_b32 v154, v{z} offset:256")
    def rg_read(i):
        def f():
            if i == 0: A.wait(lg=T["rgw"])
            for q in range(4):
                dst = [32, 48, GV][i] + 4 * q
                T["rg"] = A.ds(f"ds_read_b128 v[{dst}:{dst+3}], v{[143, 144, 143][i]} offset:{(256 if i == 2 else 0) + 16*q}")
        return f
    G1 += [rg_write, f"s_lshr_b32 s{sT3}, s{sW}, 1\ns_lshl_b32 s{sT3}, s{sT3}, 7\ns_add_u32 s{sT2}, s{sT2}, s{sT3}\nv_lshrrev_b32 v143, 5, v0", f"v_lshl_add_u32 v143, v143, 6, s{sT2}", "v_xor_b32 v144, 128, v143",
           rg_read(0), rg_read(1), rg_read(2)]
    A.force_q(0, 4)
    for n in range(40):
        j, ks = n >> 2, n & 3
        if n == FST: A.wait(vm=T["hs"]); flag_store(WS_FS); stamp("FS stored")
        if n == F1S - 1: T["f1"] = flag_load(WS_F1)
        if n == FSS - 1: T["fs"] = flag_load(WS_FS)
        if n == F1S:
            flag_wait(T["f1"], WS_F1, "f1"); stamp("F1 seen")
            for k in range(16, min(n + HD, 28)): h_item(k)
            A.force_q(0, 4)
            gz_load()
        if n == F1S + 4: F.extend(G1)
        if n == 2: F.extend(XL)
        if n == FSS:
            flag_wait(T["fs"], WS_FS, "fs"); stamp("FS seen")
            for k in range(28, n + HD): h_item(k)
            A.force_q(0, 4)
        if n == 28:
            assert not F
            A.wait(vm=T["xv"], lg=T["rg"])
            for b in range(4):
                for v in range(16):
                    e(f"v_mul_f32 v{ACC2+16*b+v}, v{ACC2+16*b+v}, v{(32 if b < 2 else 48)+v}")
                A.force_q(0, 1)
            for v in range(16): e(f"v_dot2c_f32_bf16 v{ACC2+v}, v{XV+v}, v152")
        A.wait(vm=A.token(f"H{n}"), lg=(w2r_last[j] if j < 2 else wft[n]))
        if n % 2 == 0: stamp(f"s{n}")
        for b in ((0, 1, 2, 3) if n != 28 else (3, 2, 1, 0)):
            bt, bd = b >> 1, b & 1
            h = HB + 8 * (n % HD) + 4 * bt; acc = ACC2 + 16 * b
            t = WRL[j][2 * ks + bd] if j < 2 else WF[n % 4] + 4 * bd
            e(f"v_mfma_f32_32x32x16_bf16 v[{acc}:{acc+15}], a[{h}:{h+3}], a[{t}:{t+3}], " + ("0" if n == 0 else f"v[{acc}:{acc+15}]"))
            if b == 0 and ks == 3 and 2 <= j <= 6: A.push(f"R{j+4}", ring_item(j + 4))
            if b == 0: w_reads(n + 2)
            if b == 3 and n >= 38: w_reads(n + 4)
            if b in (0, 2): A.force_q(0, 1 if len(A.q[0]) <= 2 else 2)
            if b == 1 or (b == 3 and not A.q[0]): A.force_q(1, 1)
            fill(3)
        k = n + HD
        if k < 44 and (k < 16 or (k < 28 and n >= F1S) or n >= FSS): h_item(k)
    RO = {1: PB, 2: PB + 4096, 3: PA + 8192 - 8192}
    RO = {1: 8192, 2: 8192 + 4096, 3: None}
    e(f"s_add_u32 s{sT0}, s{sM0}, 65536\nv_add_u32 v1, s{sT0}, v31\nv_add_u32 v8, s{sM8}, v31")
    e("v_xor_b32 v3, 0x4000, v1\nv_xor_b32 v4, 0x8000, v1\nv_xor_b32 v5, 0x6000, v8")
    e(f"v_lshrrev_b32 v6, 5, v0\nv_lshlrev_b32 v6, 15, v6\nv_and_b32 v7, 31, v0\nv_lshl_add_u32 v6, v7, 2, v6\ns_lshl_b32 s{sXB}, s{sXB}, 1")
    A.wait(vm=A.token("H43"), lg=wft[43])
    stamp("s40")
    assert not A.q[0] and not A.q[1]
    def red_write(b, q):
        r = ACC2 + 16 * b + 4 * q
        if b < 3: A.ds(f"ds_write_b128 v1, v[{r}:{r+3}] offset:{RO[b] + q*1024}")
        else: A.ds(f"ds_write_b128 v8, v[{r}:{r+3}] offset:{q*1024}")
    prev = None
    for b in (1, 2, 3, 0):
        bt, bd = b >> 1, b & 1
        for n in range(40, 44):
            h = HB + 8 * (n % HD) + 4 * bt; acc = ACC2 + 16 * b; t = WF[n % 4] + 4 * bd
            e(f"v_mfma_f32_32x32x16_bf16 v[{acc}:{acc+15}], a[{h}:{h+3}], a[{t}:{t+3}], v[{acc}:{acc+15}]")
            if prev is not None and n == 42: e("s_nop 7")
            if prev is not None and n >= 42: red_write(prev, 2 * (n - 42)); red_write(prev, 2 * (n - 42) + 1)
        prev = b
    stamp("mfma done")
    A.wait(lg=A.lg)
    e("s_barrier")
    rt = {}
    for q in range(4):
        for b in (1, 2, 3):
            r = 128 + 16 * (b - 1) + 4 * q
            rt[(q, b)] = A.ds(f"ds_read_b128 v[{r}:{r+3}], v{2+b} offset:{(RO[b] or 0) + q*1024}")
    for q in range(4):
        A.wait(lg=rt[(q, 3)])
        for i in range(4):
            v = 4 * q + i
            e(f"v_add_f32 v{128+v}, v{128+v}, v{144+v}\nv_add_f32 v{ACC2+v}, v{ACC2+v}, v{160+v}\nv_add_f32 v{ACC2+v}, v{ACC2+v}, v{128+v}\nv_mul_f32 v{ACC2+v}, v{ACC2+v}, v{GV+v}")
            if v % 2 == 0 and v > 0: e(f"s_add_u32 s{sXB}, s{sXB}, 4096")
            A.L.append(f"buffer_store_dword v{ACC2+v}, v6, {OUT}, s{sXB} offen offset:{(v%2)*2048}" + ["", " sc1", " nt", " sc0 sc1"][OUTF])
    if stamps:
        e("s_waitcnt vmcnt(0)")
        stamp("end")
        e("s_memrealtime s[34:35]\ns_waitcnt lgkmcnt(0)")
        e(f"s_lshl_b32 s{sT0}, s2, 2\ns_add_u32 s{sT0}, s{sT0}, s{sW}\ns_lshl_b32 s{sT0}, s{sT0}, 8\ns_add_u32 s{sT0}, s{sT0}, {WS_STAMP:#x}\nv_mov_b32 v1, 0")
        n = len(stamp_names); assert n <= 62
        for i in range(max(0, n - len(stamp_regs)), n): e(f"v_writelane_b32 v255, s{stamp_regs[i % len(stamp_regs)]}, {i}")
        e(f"v_subrev_u32 v255, s14, v255\ns_andn2_b32 s100, s100, 1\ns_nop 1\nv_writelane_b32 v255, s100, 62\nv_writelane_b32 v255, s34, 63\nv_lshlrev_b32 v1, 2, v0")
        e(f"buffer_store_dword v255, v1, {WS}, s{sT0} offen")
    e("L_end:\ns_endpgm")
    body = A.text()
    hdr = HEADER + f"; @launch grid=(256,1,1) block=(256,1,1) lds={LDS_BYTES}\n"
    if stamps: hdr += "; STAMPS: " + " | ".join(stamp_names) + "\n"
    hdr += '.amdgcn_target "amdgcn-amd-amdhsa--gfx950"\n.text\n' + f".globl {KNAME}\n.p2align 8\n.type {KNAME},@function\n"
    tail = f""".section .rodata,"a"
.p2align 6
.amdhsa_kernel {KNAME}
  .amdhsa_next_free_vgpr 512
  .amdhsa_next_free_sgpr 102
  .amdhsa_accum_offset 256
  .amdhsa_group_segment_fixed_size 0
  .amdhsa_kernarg_size 128
  .amdhsa_user_sgpr_count 2
  .amdhsa_user_sgpr_kernarg_segment_ptr 1
  .amdhsa_system_sgpr_workgroup_id_x 1
.end_amdhsa_kernel
"""
    return hdr + body + tail

if __name__ == "__main__":
    out = sys.argv[1] if len(sys.argv) > 1 else "k.s"
    kw = {}
    for a in sys.argv[2:]:
        k, v = a.split("="); kw[k] = int(v)
    open(out, "w").write(gen(**kw))
```

```python
import sys
from asmlib import Sched

KNAME = "gated_mix__ssm_conv_s5__dense_activation_relu__prompt_kernel"
HEADER = open("gated_mix__ssm_conv_s5__dense_activation_relu__prompt.s.ref").read().split("; Override")[0]

RT_PITCH = 44 * 4096
WS_F0, WS_F1, WS_FS = 0xB00000, 0xB20000, 0xB40000
WS_AGG, WS_GZ, WS_STAMP, WS_SIZE = 0xB60000, 0xB80000, 0xB90000, 0xBD0000
OOB = 0x40000000
L_MISC = 131072
L_EBUF = L_MISC
L_TRP  = L_MISC + 4096
L_RG   = L_MISC + 4096 + 18432
LDS_BYTES = L_RG + 2048
PA, PB, PC, PD = 65536, 65536 + 8192, 0, 32768
POS = {0: PA, 1: PB, 2: PA, 3: PB, 4: PC, 5: PD, 6: PA, 7: PB, 8: PC, 9: PD, 10: PA}
KSTR = 64 * 3584

def gen(stamps=0, SPIN=20000, CAD=64, BURST=3, HD=12, LB=3, DU=6, ROT=1,
        W0=28, W1S=34, F0S=40, MW=6, MB=1, MC=3, CP=1, F0L=58, AGL=60, F1S=10, FST=5, FSS=19, TLB=0, TW=0, TB=0, H1=11, HP=8, UST=6, WSOFF=0, OUTF=0, DMAF=0, PF=2, EB=42, CADW=90, NF3=4):
    A = Sched(CAD, BURST); e = A.e
    sW, sRB, sCB, sM2, sN2, sKB, sXCD, sN0, sN1 = 3, 4, 5, 6, 7, 8, 9, 10, 11
    NN = "s[10:11]"
    X, W1, BRE, BIM, W2, CRE, CIM, WS, OUT, AGG = [f"s[{b}:{b+3}]" for b in range(48, 88, 4)]
    sXB, sWB, sM0, sKC, sT0, sT1, sT2, sT3, sH0, sH1, sCNT, sP = 88, 89, 90, 91, 92, 93, 94, 95, 96, 97, 98, 99
    sB0, sB1, sU0, sU1 = 12, 13, 42, 43
    sUN = [34, 35, 36, 37, 38, 39, 47]
    sM8 = 46
    sUM, sUB, sUS = 20, 21, 30
    U1S = "s[24:27]"
    stamp_regs = [0, 16, 18, 22, 28, 40]
    stamp_names = []; pend = []
    def stamp(name, sset=1):
        if stamps and (sset == 1 or sset == stamps):
            i = len(stamp_names); r = stamp_regs[i % len(stamp_regs)] if i >= 2 else stamp_regs[i]
            if i >= len(stamp_regs): A.L.append(f"v_writelane_b32 v255, s{r}, {i - len(stamp_regs)}")
            stamp_names.append(name)
            A.L.append(f"s_memtime s[{r}:{r+1}]")
    def srd(base, ptr, size):
        e(f"s_mov_b32 s{base}, s{ptr}\ns_mov_b32 s{base+1}, s{ptr+1}\ns_mov_b32 s{base+2}, {size:#x}\ns_mov_b32 s{base+3}, 0x20000")
    class NoBG:
        def __enter__(s): A.off += 1
        def __exit__(s, *a): A.off -= 1
    nobg = NoBG()
    F = []
    def fill(k):
        while k > 0 and F:
            p = F.pop(0)
            if callable(p): p()
            else: e(p)
            k -= 1

    e(f"{KNAME}:")
    e("s_cmp_ge_u32 s2, 256\ns_cbranch_scc1 L_end")
    e("s_load_dwordx16 s[16:31], s[0:1], 0")
    e("s_load_dwordx16 s[32:47], s[0:1], 64")
    if CP:
        e(f"s_getpc_b64 s[12:13]\nL_pc:\nv_lshrrev_b32 v1, 6, v0\nv_and_b32 v2, 63, v0\nv_mul_u32_u24 v1, (L_end - L_pc) / 512 + 1, v1\nv_add_lshl_u32 v1, v1, v2, 7\nv_cmp_gt_u32 vcc, (L_end - L_pc) / 512 + 1, v2\ns_nop 1\ns_mov_b64 exec, vcc")
        e("global_load_dword v241, v1, s[12:13]\ns_mov_b64 exec, -1")
    e("s_memrealtime s[100:101]")
    if stamps: e("s_memtime s[14:15]")
    e("v_lshrrev_b32 v1, 6, v0")
    e("v_and_b32 v0, 63, v0")
    e(f"v_readfirstlane_b32 s{sW}, v1")
    e(f"s_and_b32 s{sXCD}, s2, 7\ns_lshr_b32 s{sT1}, s2, 3")
    e(f"s_and_b32 s{sN2}, s{sT1}, 7\ns_lshr_b32 s{sT2}, s{sT1}, 3")
    e(f"s_and_b32 s{sRB}, s{sXCD}, 1\ns_lshl_b32 s{sRB}, s{sRB}, 3\ns_add_u32 s{sRB}, s{sRB}, s{sN2}")
    e(f"s_lshr_b32 s{sT0}, s{sXCD}, 1\ns_lshl_b32 s{sCB}, s{sT0}, 2\ns_add_u32 s{sCB}, s{sCB}, s{sT2}")
    e(f"s_lshl_b32 s{sM2}, s{sXCD}, 2\ns_add_u32 s{sM2}, s{sM2}, s{sT2}")
    e(f"s_mul_i32 s{sT0}, s{sT0}, 7\ns_lshl_b32 s{sH1}, s{sT2}, 1\ns_add_u32 s{sH1}, s{sH1}, s{sT0}")
    e(f"s_lshl_b32 s{sXB}, s{sRB}, 2\ns_add_u32 s{sXB}, s{sXB}, s{sW}\ns_lshl_b32 s{sXB}, s{sXB}, 15")
    e(f"s_lshl_b32 s{sM0}, s{sW}, 14\ns_lshl_b32 s{sP}, s{sW}, 11\ns_lshl_b32 s{sT0}, s{sH1}, 7\ns_mul_i32 s{sWB}, s{sW}, {16*3584}\ns_add_u32 s{sWB}, s{sWB}, s{sT0}")
    e("v_lshrrev_b32 v1, 4, v0\nv_and_b32 v12, 7, v0\nv_xor_b32 v2, v12, v1\nv_lshlrev_b32 v2, 4, v2")
    e("v_lshrrev_b32 v3, 5, v0\nv_lshlrev_b32 v3, 14, v3")
    e("v_bfe_u32 v4, v0, 3, 2\nv_lshl_add_u32 v3, v4, 10, v3")
    e("v_add_u32 v4, v3, v2\nv_xor_b32 v8, 64, v2\nv_add_u32 v5, v3, v8\nv_add_u32 v5, 3072, v5")
    e("v_add_u32 v6, 6144, v4\nv_add_u32 v7, 6144, v5")
    e("v_lshrrev_b32 v30, 3, v0\nv_mul_u32_u24 v9, 3584, v30\nv_and_b32 v1, 1, v1\nv_lshlrev_b32 v1, 2, v1\nv_xor_b32 v12, v12, v1\nv_lshl_add_u32 v9, v12, 4, v9")
    e(f"v_add_u32 v10, {8*3584-1024}, v9")
    e(f"s_mov_b32 s{sKC}, " + (f"s{sXCD}" if ROT else "0") + f"\ns_mov_b32 s50, {2048*1024:#x}\ns_mov_b32 s51, 0x20000\ns_mov_b32 s54, {512*3584:#x}\ns_mov_b32 s55, 0x20000")
    e("s_waitcnt lgkmcnt(0)")
    e("s_mov_b32 s48, s16\ns_mov_b32 s49, s17\ns_mov_b32 s52, s36\ns_mov_b32 s53, s37")
    late_out = True

    def dman(setup, vb, srdn, sreg, n=4):
        fns = []
        for i in range(n):
            def f(i=i):
                if i == 0: e(setup)
                return A.vmem(f"buffer_load_dwordx4 v{vb+i}, {srdn}, s{sreg} offen offset:{i*1024} " + ["", "nt ", "sc1 "][DMAF] + "lds")
            fns.append(f)
        return fns
    def adv(r): return f"\ns_add_u32 s{r}, s{r}, 1\ns_and_b32 s{r}, s{r}, 7"
    sKU = 34
    def x_item(c):
        sx = (f"s_lshl_b32 s{sB0}, s{sKC}, 7\ns_add_u32 s{sB0}, s{sB0}, s{sXB}" + adv(sKC)) if ROT else f"s_add_u32 s{sB0}, s{sXB}, {c*128}"
        return dman(f"s_add_u32 m0, s{sM0}, {65536 + (c&3)*4096}\n" + sx, 4, X, sB0)
    def u0_item(c):
        su = (f"s_add_u32 s{sB1}, s{sXCD}, {c}\ns_and_b32 s{sB1}, s{sB1}, 7\ns_mul_i32 s{sB1}, s{sB1}, {KSTR}\ns_add_u32 s{sB1}, s{sB1}, s{sWB}") if ROT else f"s_add_u32 s{sB1}, s{sWB}, {c*KSTR}"
        return dman(f"s_add_u32 m0, s{sP}, {c*8192}\n" + su, 9, W1, sB1, 2)
    def xu_item(c): return x_item(c) + u0_item(c)
    def w_item(q):
        c = q & 7
        if q < 16:
            sb = (f"s_lshl_b32 s{sB0}, s{sKB}, 7\ns_add_u32 s{sB0}, s{sB0}, s{sUB}" + adv(sKB)) if ROT else f"s_add_u32 s{sB0}, s{sUB}, {c*128}"
            return dman(f"s_add_u32 m0, s{sUM}, {c*8192}\n" + sb, 8, BRE, sB0, 1) + dman(f"s_add_u32 m0, s{sUM}, {c*8192+4096}\ns_nop 0", 8, BIM, sB0, 1)
        pre = ""
        if q == 16:
            pre = f"s_lshl_b32 s{sUM}, s{sUM}, 1\ns_lshl_b32 s{sB0}, s{sW}, 5\ns_cmp_eq_u32 s{sUS}, 128\ns_cselect_b32 s{sUB}, s{sB0}, s{sWB}\n"
        if ROT: su = f"s_mul_i32 s{sB0}, s{sKB}, s{sUS}\ns_add_u32 s{sB0}, s{sB0}, s{sUB}" + adv(sKB)
        else: su = f"s_mov_b32 s{sB0}, s{sUB}\ns_add_u32 s{sUB}, s{sUB}, s{sUS}"
        return dman(pre + f"s_add_u32 m0, s{sUM}, {c*8192}\n" + su, 11, U1S, sB0, 2)
    def ring_item(j):
        pos = POS[j]
        pre = ""
        if j == 0:
            pre = ("v_lshrrev_b32 v7, 3, v0\nv_lshlrev_b32 v7, 10, v7\nv_bfe_u32 v6, v0, 4, 1\nv_lshlrev_b32 v6, 2, v6\nv_and_b32 v5, 7, v0\nv_xor_b32 v6, v6, v5\nv_lshl_add_u32 v4, v6, 4, v7\n"
                   "v_add_u32 v5, 7168, v4\nv_add_u32 v6, 14336, v4\nv_add_u32 v7, 21504, v4\n")
        if j == 7:
            pre = ("v_lshrrev_b32 v11, 3, v0\nv_lshlrev_b32 v11, 10, v11\nv_lshrrev_b32 v10, 4, v0\nv_and_b32 v9, 7, v0\nv_xor_b32 v10, v10, v9\nv_lshl_add_u32 v8, v10, 4, v11\n"
                   "v_xor_b32 v9, 64, v8\nv_add_u32 v9, 7168, v9\nv_add_u32 v10, 14336, v8\nv_add_u32 v11, 14336, v9\n")
        if j < 7:
            s0 = f"s_lshl_b32 s{sB0}, s{sUN[j]}, 4\ns_lshl_b32 s{sB1}, s{sN2}, 7\ns_add_u32 s{sB0}, s{sB0}, s{sB1}"
            srdn = W2; vb = 4
        else:
            jj = j - 7
            s0 = f"s_lshl_b32 s{sB0}, s{sW}, 8\ns_lshl_b32 s{sB1}, s{sN2}, 16\ns_add_u32 s{sB0}, s{sB0}, s{sB1}"
            if jj >> 1: s0 += f"\ns_add_u32 s{sB0}, s{sB0}, 128"
            srdn = CIM if jj & 1 else CRE; vb = 8
        sm = sM0 if pos >= 65536 else sM8
        return (dman(pre + f"s_add_u32 m0, s{sm}, {pos}\n" + s0, vb, srdn, sB0)
              + dman(f"s_add_u32 m0, s{sm}, {pos+4096}\ns_add_u32 s{sB0}, s{sB0}, 32768", vb, srdn, sB0))

    stamp("karg")
    A.push("c0", xu_item(0)); A.push("c1", xu_item(1)); A.force(12)
    stamp("c1 issued")
    e(f"v_and_b32 v29, 31, v0\nv_lshl_add_u32 v3, s{sCB}, 5, v29\nv_lshlrev_b32 v3, 1, v3")
    tp0 = A.vmem("global_load_ushort v142, v3, s[18:19]", heavy=False)
    tp1 = A.vmem("global_load_ushort v143, v3, s[20:21]", heavy=False)
    tp2 = A.vmem("global_load_ushort v144, v3, s[30:31]", heavy=False)
    with nobg:
        e(f"s_or_b32 s100, s100, 1\ns_or_b32 s{sT0}, s2, s{sW}\ns_cmp_lg_u32 s{sT0}, 0\ns_cbranch_scc1 L_nononce")
        e("v_mov_b32 v1, s100\nv_mov_b32 v3, 0\ns_mov_b64 exec, 1")
        e("global_store_dword v3, v1, s[44:45] sc1")
        e("s_mov_b64 exec, -1")
        e("L_nononce:")
    XA, BA, UA, TAhi, VO1, FT, VZ, TAlo = 13, 17, 21, 23, 25, 26, 28, 29
    e(f"s_lshl_b32 s{sT0}, s{sW}, 13\ns_and_b32 s{sT1}, s{sW}, 1\ns_lshl_b32 s{sT1}, s{sT1}, 6\nv_xor_b32 v8, s{sT1}, v2\nv_lshl_add_u32 v8, v30, 10, v8\nv_add_u32 v8, s{sT0}, v8")
    e(f"s_lshl_b32 s{sUB}, s{sCB}, 15\ns_lshl_b32 s{sUM}, s{sW}, 10\ns_mov_b32 s{sKB}, " + (f"s{sXCD}" if ROT else "0"))
    e(f"v_and_b32 v1, 1, v30\nv_cmp_eq_u32 vcc, v1, v12\nv_and_b32 v1, 6, v30\nv_lshlrev_b32 v1, 1, v1\nv_mov_b32 v3, {OOB:#x}\nv_cndmask_b32 v1, v3, v1, vcc")
    e(f"s_cmp_eq_u32 s{sT2}, 3\ns_cselect_b64 vcc, -1, 0\nv_add_u32 v11, 128, v9\nv_add_u32 v12, 128, v10\nv_add_u32 v3, 1024, v1\nv_add_u32 v1, 16, v1\nv_cndmask_b32 v11, v11, v3, vcc\nv_cndmask_b32 v12, v12, v1, vcc")
    e("s_sub_u32 s40, s40, 1024\ns_subb_u32 s41, s41, 0")
    if TLB:
        e("v_mov_b32 v3, 0\ns_mov_b64 exec, 1")
        for p in (22, 24, 38, 26, 28, 46, 42): A.vmem(f"global_load_dword v241, v3, s[{p}:{p+1}]", heavy=False)
        e("s_mov_b64 exec, -1")
    def mw(part):
        tab, lanes, last = {0: ([(0, 48), (512, 52)], 32, 960), 1: ([(0, 56), (256, 60), (512, 68), (768, 72)], 16, 1024), 2: ([(0, 64)], 16, 896)}[part]
        with nobg:
            e(f"s_lshl_b32 s{sT0}, s2, 2\ns_add_u32 s{sT0}, s{sT0}, s{sW}\ns_cmp_ge_u32 s{sT0}, {last}\ns_cbranch_scc1 L_nomw{part}")
            e(f"s_mov_b64 s[100:101], s[{tab[0][1]}:{tab[0][1]+1}]" if False else f"s_mov_b32 s{sMA}, s{tab[0][1]}\ns_mov_b32 s{sMA+1}, s{tab[0][1]+1}\ns_mov_b32 s{sT1}, s{sT0}")
            for lo, p in tab[1:]:
                e(f"s_sub_u32 s{sCNT}, s{sT0}, {lo}\ns_cmp_ge_u32 s{sT0}, {lo}\ns_cselect_b32 s{sMA}, s{p}, s{sMA}\ns_cselect_b32 s{sMA+1}, s{p+1}, s{sMA+1}\ns_cselect_b32 s{sT1}, s{sCNT}, s{sT1}")
            e(f"s_mul_i32 s{sT1}, s{sT1}, {lanes*128}\nv_lshl_add_u32 v242, v0, 7, s{sT1}\ns_mov_b64 exec, {(1 << lanes) - 1:#x}" if lanes == 16 else f"s_mul_i32 s{sT1}, s{sT1}, {lanes*128}\nv_lshl_add_u32 v242, v0, 7, s{sT1}\ns_mov_b32 exec_hi, 0")
            e(f"global_load_dword v241, v242, s[{sMA}:{sMA+1}]\ns_mov_b64 exec, -1\nL_nomw{part}:")
    sMA = 42
    srd(80, 42, 2048 * 2048)
    if MW & 1: mw(0)
    A.push("c2", xu_item(2)); A.push("c3", xu_item(3))
    for c in range(4, 8): A.push(f"u{c}", u0_item(c))
    A.next_bg = A.t
    srd(56, 22, 512 * 1024); srd(60, 24, 512 * 1024); srd(68, 26, 512 * 1024); srd(72, 28, 512 * 1024)
    e(f"s_mov_b32 s{sUS}, {KSTR}\ns_mov_b32 s{sT3}, 4096\ns_cmp_eq_u32 s{sT2}, 3\ns_cselect_b32 s24, s40, s36\ns_cselect_b32 s25, s41, s37\ns_cselect_b32 s26, 0x800, s54\ns_mov_b32 s27, 0x20000\ns_cselect_b32 s{sUS}, 128, s{sUS}\ns_cselect_b32 s{sT3}, {OOB:#x}, s{sT3}")
    if WSOFF: e(f"s_add_u32 s46, s46, {WSOFF << 20:#x}\ns_addc_u32 s47, s47, 0")
    srd(64, 38, 1792 * 1024); srd(76, 46, WS_SIZE)
    e("v_lshlrev_b32 v31, 4, v0")
    e(f"v_add_u32 v{VO1}, s{sT3}, v31")
    e("v_lshrrev_b32 v1, 5, v0\nv_bfe_u32 v2, v0, 1, 3\nv_xor_b32 v2, v2, v1\nv_lshlrev_b32 v2, 4, v2")
    e(f"v_lshl_add_u32 v{BA}, v29, 7, v2\nv_xor_b32 v{BA+1}, 32, v{BA}\nv_xor_b32 v{BA+2}, 64, v{BA}\nv_xor_b32 v{BA+3}, 96, v{BA}")
    e(f"s_add_u32 s{sT0}, s{sM0}, 65536\n" + "\n".join(f"v_add_u32 v{XA+s}, s{sT0}, v{BA+s}" for s in range(4)))
    e("v_bfe_u32 v2, v0, 2, 2\nv_lshl_add_u32 v3, v1, 3, v2\nv_lshl_add_u32 v1, v1, 2, v2\nv_bfe_u32 v2, v0, 3, 1\nv_lshlrev_b32 v2, 6, v2")
    e(f"v_bfe_u32 v{UA}, v0, 4, 1\nv_lshl_add_u32 v2, v{UA}, 5, v2\nv_and_b32 v{UA}, 3, v0\nv_lshl_add_u32 v2, v{UA}, 3, v2")
    e(f"v_lshl_add_u32 v{UA}, v3, 7, v2\nv_xor_b32 v{UA+1}, 64, v{UA}")
    e(f"s_and_b32 s{sT0}, s{sW}, 1\ns_lshl_b32 s{sT0}, s{sT0}, 6\nv_lshl_add_u32 v1, v1, 7, v2\nv_xor_b32 v1, s{sT0}, v1\ns_lshl_b32 s{sT1}, s{sW}, 13\nv_add_u32 v{TAlo}, s{sT1}, v1\nv_xor_b32 v{TAlo+1}, 64, v{TAlo}")
    e(f"s_add_u32 s{sT1}, s{sT1}, 0x10000\nv_add_u32 v{TAhi}, s{sT1}, v{TAlo}\nv_add_u32 v{TAhi+1}, s{sT1}, v{TAlo+1}")
    e(f"s_lshl_b32 s{sT0}, s{sW}, 9\ns_add_u32 s{sT0}, s{sT0}, {L_EBUF}\nv_lshl_add_u32 v1, v0, 3, s{sT0}\nv_mov_b32 v2, 0\nv_mov_b32 v3, 0")
    A.ds("ds_write_b64 v1, v[2:3]")
    SC = [f"s_lshl_b32 s{sT0}, s{sCB}, 13\ns_sub_u32 s{sT1}, 16, s{sRB}\ns_lshl_b32 s{sT1}, s{sT1}, 9\ns_add_u32 s{sT0}, s{sT0}, s{sT1}\ns_add_u32 s{sT0}, s{sT0}, {WS_AGG:#x}\ns_add_u32 s84, s46, s{sT0}\ns_addc_u32 s85, s47, 0",
          f"s_lshl_b32 s86, s{sRB}, 9\ns_mov_b32 s87, 0x20000\ns_mul_i32 s{sT3}, s{sW}, 7"]
    for j in range(4):
        SC.append(f"s_add_u32 s{sT0}, s{sXCD}, {j}\ns_and_b32 s{sT0}, s{sT0}, 3\ns_lshl_b32 s{sT0}, s{sT0}, 1\ns_add_u32 s{sT0}, s{sT0}, s{sT3}\ns_lshl_b32 s{sUN[j]}, s{sT0}, 12")
    SC.append(f"s_mul_i32 s{sT1}, s{sXCD}, 43\ns_lshr_b32 s{sT1}, s{sT1}, 7\ns_mul_i32 s{sT1}, s{sT1}, 3\ns_sub_u32 s{sT1}, s{sXCD}, s{sT1}\ns_add_u32 s{sT3}, s{sT3}, 1")
    for j in range(4, 7):
        SC.append(f"s_lshl_b32 s{sT0}, s{sT1}, 1\ns_add_u32 s{sT0}, s{sT0}, s{sT3}\ns_lshl_b32 s{sUN[j]}, s{sT0}, 12" + (f"\ns_add_u32 s{sT1}, s{sT1}, 1\ns_cmp_eq_u32 s{sT1}, 3\ns_cselect_b32 s{sT1}, 0, s{sT1}" if j < 6 else ""))
    SC.append(f"s_lshr_b32 s{sT0}, s{sXB}, 15\ns_mul_i32 s{sH0}, s{sT0}, {RT_PITCH}\ns_lshl_b32 s{sH1}, s{sH1}, 12\ns_add_u32 s{sH1}, s{sH1}, s{sH0}")
    SC.append(f"s_lshl_b32 s{sM8}, s{sW}, 13")
    for p in SC: e(p)

    Lr, Li, L16r, L16i, PWr, PWi, L128r, L128i, L1Kr, L1Ki, C2r, C2i = range(128, 140)
    LOCr, LOCi = 140, 141
    def csq(dr, di, sr, si):
        return [f"v_mul_f32 v{dr}, v{sr}, v{sr}", f"v_mul_f32 v{di}, v{sr}, v{si}", f"v_fma_f32 v{dr}, -v{si}, v{si}, v{dr}", f"v_add_f32 v{di}, v{di}, v{di}"]
    def cmul_l(dr, di, ar, ai, br, bi):
        return [f"v_mul_f32 v{dr}, v{ar}, v{br}", f"v_mul_f32 v{di}, v{ar}, v{bi}", f"v_fma_f32 v{dr}, -v{ai}, v{bi}, v{dr}", f"v_fmac_f32 v{di}, v{ai}, v{br}"]
    def cfma_l(dr, di, lr, li, sr, si, ar, ai):
        return [f"v_fma_f32 v{dr}, v{lr}, v{sr}, v{ar}", f"v_fma_f32 v{di}, v{lr}, v{si}, v{ai}", f"v_fma_f32 v{dr}, -v{li}, v{si}, v{dr}", f"v_fmac_f32 v{di}, v{li}, v{sr}"]
    P = [lambda: A.wait(vm=tp2)] + f"""v_lshlrev_b32 v142, 16, v142
v_lshlrev_b32 v143, 16, v143
v_lshlrev_b32 v144, 16, v144
v_mul_f32 v144, 0x3fb8aa3b, v144
v_exp_f32 v144, v144
v_cvt_pk_bf16_f32 v144, v144, v144
v_lshlrev_b32 v144, 16, v144
v_mul_f32 v145, v144, v142
v_mul_f32 v146, v144, v143
v_mul_f32 v145, 0x3fb8aa3b, v145
v_exp_f32 v145, v145
v_mul_f32 v146, 0.15915494, v146
v_rndne_f32 v147, v146
v_sub_f32 v146, v146, v147
v_cos_f32 v147, v146
v_sin_f32 v148, v146
v_mul_f32 v{Lr}, v145, v147
v_mul_f32 v{Li}, v145, v148
v_add_f32 v144, -1.0, v{Lr}
v_mul_f32 v145, v142, v142
v_fmac_f32 v145, v143, v143
v_rcp_f32 v145, v145
v_mul_f32 v146, v144, v142
v_add_f32 v145, v145, v145
v_fmac_f32 v146, v{Li}, v143
v_mul_f32 v{C2r}, v146, v145
v_mul_f32 v147, v{Li}, v142
v_fma_f32 v147, -v144, v143, v147
v_mul_f32 v{C2i}, v147, v145""".split("\n")
    P += csq(142, 143, Lr, Li) + csq(144, 145, 142, 143) + csq(142, 143, 144, 145) + csq(L16r, L16i, 142, 143)
    P += csq(142, 143, L16r, L16i) + ["v_cmp_lt_u32 vcc, 31, v0", f"v_cndmask_b32 v146, 1.0, v{L16r}, vcc", f"v_cndmask_b32 v147, 0, v{L16i}, vcc"]
    P += csq(144, 145, 142, 143) + [f"s_bitcmp1_b32 s{sW}, 0\ns_cselect_b64 vcc, -1, 0", "v_cndmask_b32 v142, 1.0, v142, vcc", "v_cndmask_b32 v143, 0, v143, vcc"]
    P += cmul_l(148, 149, 146, 147, 142, 143) + csq(L128r, L128i, 144, 145)
    P += [f"s_bitcmp1_b32 s{sW}, 1\ns_cselect_b64 vcc, -1, 0", "v_cndmask_b32 v144, 1.0, v144, vcc", "v_cndmask_b32 v145, 0, v145, vcc"]
    P += cmul_l(PWr, PWi, 148, 149, 144, 145)
    P += csq(142, 143, L128r, L128i) + csq(144, 145, 142, 143) + csq(L1Kr, L1Ki, 144, 145)
    EA, GA, FA, AGA, AGE = 150, 151, 156, 158, 159
    P += [f"s_lshl_b32 s{sT2}, s{sW}, 9\ns_add_u32 s{sT2}, s{sT2}, {L_EBUF}\nv_lshrrev_b32 v1, 5, v0", "v_and_b32 v2, 31, v0", f"v_lshlrev_b32 v{GA}, 4, v2", f"v_lshl_add_u32 v{AGA}, v1, 12, v{GA}",
          f"v_lshlrev_b32 v{AGE}, 3, v1", f"v_sub_u32 v{AGE}, s{sRB}, v{AGE}", f"v_med3_i32 v{AGE}, v{AGE}, 0, 8",
          "v_lshlrev_b32 v1, 8, v1", "v_lshl_add_u32 v1, v2, 3, v1", f"v_add_u32 v{EA}, s{sT2}, v1",
          "v_bfe_u32 v2, v0, 2, 1", "v_lshlrev_b32 v2, 4, v2", "v_and_b32 v3, 3, v0", "v_add_u32 v1, v2, v3",
          f"s_lshl_b32 s{sT2}, s{sM2}, 5\ns_lshl_b32 s{sT3}, s{sW}, 2\ns_add_u32 s{sT2}, s{sT2}, s{sT3}\nv_add_u32 v2, s{sT2}, v1", f"v_lshlrev_b32 v{FA}, 7, v2",
          "v_bfe_u32 v2, v0, 3, 2", "v_lshl_add_u32 v1, v2, 2, v1", "v_lshlrev_b32 v157, 2, v1"]

    TWS = [20, 26, 33, 41, 49, 57, 65, 73, 80, 86, 92]
    XF = 0; UT = 128; BFA = 160
    ACR, ACI, AU0, AU1 = 32, 48, 64, 96
    WRL = {0: [192 + 4 * i for i in range(8)], 1: [224 + 4 * i for i in range(8)], 2: [160 + 4 * i for i in range(8)], 3: [192 + 4 * i for i in range(8)]}
    WRK = {0: 'a', 1: 'a', 2: 'a', 3: 'v'}
    T = {}; rtok = {}; w2r_last = {}
    def reads(g):
        st, m = g >> 1, g & 1
        ps, u = st >> 5, st & 31
        c, s = u >> 2, u & 3
        if ps == 1:
            b = BFA + 8 * (u & 3) + 4 * m
            rtok[g] = A.ds(f"ds_read_b128 a[{b}:{b+3}], v{BA+s} offset:{c*8192 + m*4096}")
        else:
            if ps == 0 and m == 0:
                r = XF + 4 * u
                A.ds(f"ds_read_b128 a[{r}:{r+3}], v{XA+s} offset:{(c & 3) * 4096}")
            t = UT + 4 * (g % 8); off = c * 8192 + 16 * s * 128
            A.ds(f"ds_read_b64_tr_b16 a[{t}:{t+1}], v{UA+m} offset:{off}")
            rtok[g] = A.ds(f"ds_read_b64_tr_b16 a[{t+2}:{t+3}], v{UA+m} offset:{off + 512}")
    def w2r_piece(j, k):
        ks, dts = k >> 1, k & 1
        pos = POS[j]; hi = pos >= 65536; off = pos & 0xffff
        if k == 0: A.wait(vm=A.token(f"R{j}"))
        t = WRL[j][k]; ar = (TAhi if hi else TAlo) + dts
        A.ds(f"ds_read_b64_tr_b16 {WRK[j]}[{t}:{t+1}], v{ar} offset:{off + 16*ks*128}")
        w2r_last[j] = A.ds(f"ds_read_b64_tr_b16 {WRK[j]}[{t+2}:{t+3}], v{ar} offset:{off + (16*ks+8)*128}")
    sFL = 31
    def flag_store(base):
        with nobg:
            e(f"s_add_u32 s{sT0}, s{sFL}, {base:#x}\ns_mov_b64 exec, 1")
            A.vmem(f"buffer_store_dwordx2 v[{FT}:{FT+1}], off, {WS}, s{sT0} sc1", heavy=False)
            e("s_mov_b64 exec, -1")
    def nonce_get():
        A.wait(vm=T["nonce"])
        with nobg:
            e(f"v_readfirstlane_b32 s{sN0}, v{VZ}\ns_cmp_lg_u32 s{sN0}, 0\ns_cbranch_scc1 L_nonce_ok")
            e(f"s_mov_b32 s{sCNT}, {SPIN}\nv_mov_b32 v{FT}, 0\nL_nonce_loop:\ns_sleep 2\nglobal_load_dword v{VZ}, v{FT}, s[44:45] sc1\ns_waitcnt vmcnt(0)")
            e(f"v_readfirstlane_b32 s{sN0}, v{VZ}\ns_cmp_lg_u32 s{sN0}, 0\ns_cbranch_scc1 L_nonce_ok")
            e(f"s_sub_u32 s{sCNT}, s{sCNT}, 1\ns_cmp_lg_u32 s{sCNT}, 0\ns_cbranch_scc1 L_nonce_loop\nL_nonce_ok:")
        e(f"s_not_b32 s{sN1}, s{sN0}\nv_mov_b32 v{FT}, s{sN0}\nv_mov_b32 v154, s{sN0}\nv_mov_b32 v{FT+1}, s{sN1}\nv_mov_b32 v155, s{sN1}")
        e(f"s_lshr_b32 s{sFL}, s{sXB}, 11\ns_add_u32 s{sFL}, s{sFL}, s{sCB}\ns_lshl_b32 s{sFL}, s{sFL}, 7")
    def u_epi(acc, vaddr, key):
        L = []
        for k in range(4):
            a0 = acc + 8 * k
            L += [f"v_cvt_pk_bf16_f32 v{a0+i}, v{a0+2*i}, v{a0+2*i+1}" for i in range(4)]
            L += [f"v_pk_max_i16 v{a0+i}, v{a0+i}, 0" for i in range(4)]
            def st(a0=a0, k=k): T[key] = A.vmem(f"buffer_store_dwordx4 v[{a0}:{a0+3}], v{vaddr}, {WS}, s{sH1} offen offset:{k*1024} sc1")
            L.append(st)
        return L
    S1 = []
    pp = [(142, 143), (144, 145)]; cur = (ACR, ACI)
    for v in range(1, 16):
        d = pp[v & 1]; S1 += cfma_l(d[0], d[1], Lr, Li, cur[0], cur[1], ACR + v, ACI + v); cur = d
    Er, Ei = cur
    def e_write(): T["ew"] = A.ds(f"ds_write_b64 v{EA}, v[{Er}:{Ei}] offset:{7*256}")
    S1.append(e_write)
    def e_reads():
        for k in range(7): T["er"] = A.ds(f"ds_read_b64 v[{160+2*k}:{161+2*k}], v{EA} offset:{k*256}")
    BUS = []
    for v in range(16):
        BUS += [f"v_mul_f32 v1, v{C2i}, v{ACR+v}", f"v_mul_f32 v{ACR+v}, v{C2r}, v{ACR+v}", f"v_fma_f32 v{ACR+v}, -v{C2i}, v{ACI+v}, v{ACR+v}", f"v_fma_f32 v{ACI+v}, v{C2r}, v{ACI+v}, v1"]
    S2 = [e_reads] + BUS[:8] + [lambda: A.wait(lg=T["er"])]
    cur = (160, 161)
    for k in range(1, 7):
        d = [(LOCr, LOCi), (146, 147)][k & 1]
        S2 += cfma_l(d[0], d[1], L16r, L16i, cur[0], cur[1], 160 + 2 * k, 161 + 2 * k); cur = d
    S2 += cfma_l(152, 153, L16r, L16i, LOCr, LOCi, Er, Ei)
    def agg_store():
        with nobg:
            e(f"s_cmp_lg_u32 s{sW}, 3\ns_cbranch_scc1 L_noagg")
            e(f"s_lshl_b32 s{sT0}, s{sCB}, 4\ns_add_u32 s{sT0}, s{sT0}, 15\ns_sub_u32 s{sT0}, s{sT0}, s{sRB}\ns_lshl_b32 s{sT0}, s{sT0}, 9\ns_add_u32 s{sT0}, s{sT0}, {WS_AGG:#x}")
            e("s_mov_b32 exec_lo, 0")
            e(f"buffer_store_dwordx4 v[152:155], v{GA}, {WS}, s{sT0} offen sc1")
            e("s_mov_b64 exec, -1\nL_noagg:")
        stamp("agg published")
    S2 += [agg_store] + BUS[8:]
    def agg_loads(tracked=True):
        for k in range(8):
            s = f"buffer_load_dwordx4 v[{160+4*k}:{163+4*k}], v{AGA}, {AGG}, 0 offen offset:{k*512} sc1"
            if tracked: T["agt"] = A.vmem(s)
            else: e(s)
    def flag_load(base, tracked=True):
        with nobg:
            e(f"s_mov_b32 s{sT0}, {base:#x}\ns_mov_b64 exec, 0xff")
            s = f"buffer_load_dwordx2 v[148:149], v{FA}, {WS}, s{sT0} offen sc1"
            t = A.vmem(s, heavy=False) if tracked else e(s)
            e("s_mov_b64 exec, -1")
        return t
    def flag_check(lbl):
        e(f"v_cmp_ne_u64 vcc, {NN}, v[148:149]\ns_and_b32 s{sT0}, vcc_lo, 0xff\ns_cbranch_scc0 {lbl}")
    def flag_wait(tok, base, name):
        A.wait(vm=tok)
        with nobg:
            flag_check(f"L_{name}_ok")
            e(f"s_mov_b32 s{sCNT}, {SPIN}\nL_{name}_loop:\ns_sleep 1")
            flag_load(base, tracked=False)
            e("s_waitcnt vmcnt(0)")
            flag_check(f"L_{name}_ok")
            e(f"s_sub_u32 s{sCNT}, s{sCNT}, 1\ns_cmp_lg_u32 s{sCNT}, 0\ns_cbranch_scc1 L_{name}_loop\nL_{name}_ok:")

    e(f"s_lshr_b32 s{sT0}, s2, 6\ns_lshl_b32 s{sT0}, s{sT0}, 14\nv_and_b32 v240, 15, v0\nv_lshlrev_b32 v240, 10, v240\nv_add_u32 v240, s{sT0}, v240")
    def touch(srdn, vaddr, setup, mask="0xffff"):
        with nobg:
            e(setup + f"\ns_mov_b64 exec, {mask}")
            A.vmem(f"buffer_load_dword v241, v{vaddr}, {srdn}, s{sT0} offen", heavy=False)
            e("s_mov_b64 exec, -1")
    def w_touch(j):
        if j < 7: touch(W2, 240, f"s_lshl_b32 s{sT0}, s{sUN[j]}, 4\ns_lshl_b32 s{sT1}, s{sN2}, 7\ns_add_u32 s{sT0}, s{sT0}, s{sT1}")
        else:
            jj = j - 7
            touch(CIM if jj & 1 else CRE, 240, f"s_lshl_b32 s{sT0}, s{sW}, 8\ns_lshl_b32 s{sT1}, s{sN2}, 16\ns_add_u32 s{sT0}, s{sT0}, s{sT1}" + (f"\ns_add_u32 s{sT0}, s{sT0}, 128" if jj >> 1 else ""))
    def u1_touch():
        e(f"v_and_b32 v242, 15, v0\nv_mul_u32_u24 v242, 3584, v242\nv_sub_u32 v243, v{VO1}, v31\nv_and_b32 v243, {OOB:#x}, v243\nv_add_u32 v242, v242, v243")
        touch(W1, 242, f"s_mul_i32 s{sT0}, s{sN2}, {KSTR}\ns_add_u32 s{sT0}, s{sT0}, s{sWB}\ns_add_u32 s{sT0}, s{sT0}, 128")
    A.wait(vm=A.token("c0"), lg=A.lg)
    e("s_barrier")
    stamp("chunk0 landed")
    for g in range(DU): reads(g)
    F += P
    for g in range(192):
        st, m = g >> 1, g & 1
        ps, u = st >> 5, st & 31
        c, s = u >> 2, u & 3
        vs = st - 32
        if m == 0:
            if st % 4 == 0 and st > 0: stamp(f"t{st}")
            if st == 32:
                assert not F
                A.cad = CADW
                ue = u_epi(AU0, 31, "u0st")
                F += [p for p in ue if not callable(p)] + [nonce_get]; u0sts = [p for p in ue if callable(p)]
            if UST <= vs < UST + 4:
                A.token("w15"); u0sts[vs - UST]()
            if st == 64: F += S1
            if vs == EB:
                assert "ew" in T
                A.wait(lg=T["ew"]); e("s_barrier"); F += S2
            if vs == F0S: A.wait(vm=T["u0st"]); flag_store(WS_F0); stamp("F0 stored")
            if vs == F0L: T["f0"] = flag_load(WS_F0)
            if vs == AGL: agg_loads()
            for j, s0 in ((0, W0), (1, W1S)):
                if vs == s0 + 5:
                    A.wait(lg=w2r_last[j]); A.push(f"R{j+2}", ring_item(j + 2))
            A.wait(lg=rtok[g + 1])
            if ps == 0 and s == 3 and c + 4 < 8:
                A.token(f"c{c+3}"); A.push_front(f"c{c+4}", x_item(c + 4))
            if TW and st in TWS: w_touch(TWS.index(st))
            if TB and st == 12: u1_touch()
            if st == 31: A.push("R0", ring_item(0)); A.push("R1", ring_item(1))
        xr = XF + 4 * u
        if ps == 1:
            b = BFA + 8 * (u & 3) + 4 * m; acc = ACI if m else ACR
            e(f"v_mfma_f32_32x32x16_bf16 v[{acc}:{acc+15}], a[{xr}:{xr+3}], a[{b}:{b+3}], " + ("0" if u == 0 else f"v[{acc}:{acc+15}]"))
        else:
            t = UT + 4 * (g % 8); acc = (AU1 if ps else AU0) + 16 * m
            e(f"v_mfma_f32_32x32x16_bf16 v[{acc}:{acc+15}], a[{t}:{t+3}], a[{xr}:{xr+3}], " + ("0" if u == 0 else f"v[{acc}:{acc+15}]"))
        gn = g + DU
        if gn < 64 and gn % 8 == 0:
            cn = gn // 8
            A.wait(vm=max(A.token(f"c{cn}"), A.token(f"u{cn}") if cn >= 4 else 0))
            e("s_barrier")
            if cn >= 2: A.push(f"w{8+cn-2}", w_item(8 + cn - 2))
            if cn == MB and MW & 2: mw(1)
            if cn == MC and MW & 4: mw(2)
            if cn == 5:
                e(f"v_mov_b32 v{FT}, 0")
                T["nonce"] = A.vmem(f"global_load_dword v{VZ}, v{FT}, s[44:45] sc1", heavy=False)
        elif 64 <= gn < 192 and gn % 16 == 0:
            k = (gn - 64) // 16
            A.wait(vm=A.token(f"w{9+2*k}"))
            e("s_barrier")
            if 1 <= k and k + 2 <= 7:
                A.token(f"w{9+2*(k+1)}")
                A.push_front(f"w{9+2*(k+2)}", w_item(8 + 2 * (k + 2)) + w_item(9 + 2 * (k + 2)))
            if k == 7: A.push("R4", ring_item(4))
        if gn < 192: reads(gn)
        for j, s0 in ((0, W0), (1, W1S)):
            if s0 <= vs < s0 + 4: w2r_piece(j, 2 * (vs - s0) + m)
        if ps == 0: fill(PF if g >= 4 else 0)
        elif ps == 1: fill(3)
        else: fill(4 if vs < EB else (NF3 // 2 + (m if NF3 % 2 else 0)))
    stamp("pass3 done")
    A.off += 1
    fill(1000)
    e("s_barrier")
    A.push("R5", ring_item(5))
    sC0, sC1 = sKC, sWB
    e(f"s_lshr_b32 s{sT0}, s{sW}, 1\ns_lshl_b32 s{sT1}, s{sM2}, 1\ns_add_u32 s{sT0}, s{sT0}, s{sT1}\ns_mul_i32 s{sC0}, s{sT0}, {RT_PITCH}\ns_xor_b32 s{sT2}, s{sT0}, 1\ns_mul_i32 s{sC1}, s{sT2}, {RT_PITCH}\ns_lshl_b32 s{sP}, s{sT0}, 15")
    HB = 0; WF = [96, 104, 112, 120]; ACC2 = 64
    def h_item(n):
        j, ks = n >> 2, n & 3
        r = HB + 8 * (n % HD)
        def f0():
            if ks == 0:
                if j < 7: e(f"s_add_u32 s{sU0}, s{sUN[j]}, s{sC0}\ns_add_u32 s{sU1}, s{sUN[j]}, s{sC1}")
                else: e(f"s_lshl_b32 s{sU1}, s{sW}, 14\ns_add_u32 s{sU1}, s{sU1}, {(28 + j - 7) * 4096}\ns_add_u32 s{sU0}, s{sU1}, s{sC0}\ns_add_u32 s{sU1}, s{sU1}, s{sC1}")
            return A.vmem(f"buffer_load_dwordx4 a[{r}:{r+3}], v31, {WS}, s{sU0} offen offset:{ks*1024} sc1")
        def f1():
            return A.vmem(f"buffer_load_dwordx4 a[{r+4}:{r+7}], v31, {WS}, s{sU1} offen offset:{ks*1024} sc1")
        A.push(f"H{n}", [f0, f1], prio=0)
    e(f"v_add_f32 v{VZ}, v{AU1}, v{AU1+5}")
    F += u_epi(AU1, VO1, "u1st"); fill(1000)
    e(f"s_lshr_b32 s{sT0}, s{sXB}, 8\ns_lshr_b32 s{sT1}, s{sCB}, 2\ns_lshl_b32 s{sT1}, s{sT1}, 13\ns_add_u32 s{sT0}, s{sT0}, s{sT1}\ns_add_u32 s{sT0}, s{sT0}, {WS_GZ:#x}\ns_cmp_eq_u32 s{sUS}, 128\ns_cselect_b32 s{sT1}, 0, {OOB:#x}\nv_add_u32 v157, s{sT1}, v157\ns_mov_b32 exec_hi, 0")
    T["u1st"] = A.vmem(f"buffer_store_dword v{VZ}, v157, {WS}, s{sT0} offen sc1", heavy=False)
    e("s_mov_b64 exec, -1")
    flag_wait(T["f0"], WS_F0, "f0")
    stamp("F0 seen")
    for n in range(HD): h_item(n)
    A.force_q(0, 4)
    def cnt():
        e("v_mov_b32 v146, 0")
        for k in range(8): e(f"v_cmp_eq_u64 vcc, {NN}, v[{162+4*k}:{163+4*k}]\nv_addc_co_u32 v146, vcc, 0, v146, vcc")
        e(f"v_cmp_ne_u32 vcc, v146, v{AGE}\ns_cbranch_vccz L_ag_ok")
    A.wait(vm=T["agt"])
    cnt()
    e(f"s_mov_b32 s{sCNT}, {SPIN}\nL_ag_loop:\ns_sleep 1")
    agg_loads(False)
    e("s_waitcnt vmcnt(0)")
    cnt()
    e(f"s_sub_u32 s{sCNT}, s{sCNT}, 1\ns_cmp_lg_u32 s{sCNT}, 0\ns_cbranch_scc1 L_ag_loop\nL_ag_ok:")
    stamp("agg seen")
    AG1 = []
    cur = (160 + 28, 161 + 28)
    for k in range(6, -1, -1):
        d = [(142, 143), (144, 145)][k & 1]
        AG1 += cfma_l(d[0], d[1], L128r, L128i, cur[0], cur[1], 160 + 4 * k, 161 + 4 * k); cur = d
    AG1 += ["v_mov_b32 v144, v142", "v_mov_b32 v145, v143", f"s_mul_i32 s{sT2}, s{sW}, 4608\ns_add_u32 s{sT2}, s{sT2}, {L_TRP}\nv_and_b32 v152, 31, v0", "v_mul_u32_u24 v152, 72, v152",
            "v_permlane32_swap_b32 v142, v144", "v_permlane32_swap_b32 v143, v145", "v_lshrrev_b32 v2, 5, v0"]
    AG1 += cfma_l(146, 147, L1Kr, L1Ki, 144, 145, 142, 143) + cfma_l(142, 143, PWr, PWi, 146, 147, LOCr, LOCi) + cmul_l(144, 145, C2r, C2i, 142, 143)
    AG1 += ["v_lshl_add_u32 v152, v2, 3, v152", f"v_add_u32 v152, s{sT2}, v152"]
    cur = (144, 145)
    for v in range(16):
        AG1 += [f"v_fmac_f32 v{ACR+v}, v{Lr}, v{cur[0]}", f"v_fmac_f32 v{ACI+v}, v{Lr}, v{cur[1]}", f"v_fma_f32 v{ACR+v}, -v{Li}, v{cur[1]}, v{ACR+v}", f"v_fmac_f32 v{ACI+v}, v{Li}, v{cur[0]}"]
        cur = (ACR + v, ACI + v)
        if v % 4 == 3:
            q = v >> 2
            AG1 += [f"v_cvt_pk_bf16_f32 v{160+4*q}, v{ACR+4*q}, v{ACR+4*q+1}", f"v_cvt_pk_bf16_f32 v{161+4*q}, v{ACR+4*q+2}, v{ACR+4*q+3}",
                    f"v_cvt_pk_bf16_f32 v{162+4*q}, -v{ACI+4*q}, -v{ACI+4*q+1}", f"v_cvt_pk_bf16_f32 v{163+4*q}, -v{ACI+4*q+2}, -v{ACI+4*q+3}"]
            def tw(q=q):
                A.ds(f"ds_write_b64 v152, v[{160+4*q}:{161+4*q}] offset:{16*q}")
                T["tw"] = A.ds(f"ds_write_b64 v152, v[{162+4*q}:{163+4*q}] offset:{2304+16*q}")
            AG1.append(tw)
    AG1 += ["v_bfe_u32 v3, v0, 2, 2", "v_lshl_add_u32 v153, v2, 3, v3", "v_mul_u32_u24 v153, 72, v153", "v_bfe_u32 v3, v0, 4, 1", "v_lshl_add_u32 v153, v3, 5, v153", "v_and_b32 v3, 3, v0", "v_lshl_add_u32 v153, v3, 3, v153", f"v_add_u32 v153, s{sT2}, v153"]
    F += AG1
    k = 0
    while F:
        fill(1); k += 1
        if k % H1 == 0 and f"H{HP-1}" not in A.tok: A.force_q(0, 1)
    A.token(f"H{HP-1}")
    A.wait(vm=T["u1st"]); flag_store(WS_F1); stamp("F1 stored")
    A.wait(lg=T["tw"])
    for part in range(2):
        for kk in range(2):
            r = 176 + 8 * part + 4 * kk
            A.ds(f"ds_read_b64_tr_b16 v[{r}:{r+1}], v153 offset:{part*2304 + 16*kk*72}")
            T[("tr", part, kk)] = A.ds(f"ds_read_b64_tr_b16 v[{r+2}:{r+3}], v153 offset:{part*2304 + (16*kk+4)*72}")
    e(f"s_lshr_b32 s{sT0}, s{sCB}, 1\ns_lshl_b32 s{sT0}, s{sT0}, 13\ns_and_b32 s{sT1}, s{sCB}, 1\ns_lshl_b32 s{sT1}, s{sT1}, 11\ns_add_u32 s{sT0}, s{sT0}, s{sT1}\ns_add_u32 s{sT0}, s{sT0}, s{sH0}\ns_add_u32 s{sT0}, s{sT0}, {28*4096}\ns_add_u32 s{sT1}, s{sT0}, 4096")
    for part in range(2):
        for kk in range(2):
            r = 176 + 8 * part + 4 * kk
            A.wait(lg=T[("tr", part, kk)])
            T["hs"] = A.vmem(f"buffer_store_dwordx4 v[{r}:{r+3}], v31, {WS}, s{sT1 if part else sT0} offen offset:{kk*1024} sc1")
    stamp("scan done")
    XV = 192; CA = 208; GV = 224
    XL = [f"s_and_b32 s{sT1}, s{sW}, 1\ns_lshl_b32 s{sT2}, s{sN2}, 1\ns_add_u32 s{sT1}, s{sT1}, s{sT2}\ns_lshl_b32 s{sT1}, s{sT1}, 6\ns_add_u32 s{sXB}, s{sP}, s{sT1}\nv_and_b32 v2, 31, v0\nv_lshl_add_u32 v151, v2, 1, s{sT1}",
          "v_lshrrev_b32 v1, 5, v0", "v_lshlrev_b32 v1, 14, v1", "v_lshl_add_u32 v150, v2, 1, v1",
          lambda: A.vmem("global_load_ushort v152, v151, s[32:33]", heavy=False)]
    for v in range(16):
        def xl(v=v):
            if v % 4 == 0: e(f"s_add_u32 s{sT3}, s{sXB}, {v*1024}")
            T["xv"] = A.vmem(f"buffer_load_ushort v{XV+v}, v150, {X}, s{sT3} offen offset:{(v%4)*1024}", heavy=False)
        XL.append(xl)
    XL.append(f"s_and_b32 s{sT2}, s{sW}, 1\ns_lshl_b32 s{sT2}, s{sT2}, 12\ns_add_u32 s{sT2}, s{sM8}, s{sT2}\ns_add_u32 s{sT3}, s{sM8}, 0x10000")
    for b in range(4):
        XL += [f"v_add_u32 v{CA+b}, s{sT2}, v{BA+b}", f"v_xor_b32 v{CA+4+b}, 0x1000, v{CA+b}", f"v_add_u32 v{CA+8+b}, s{sT3}, v{CA+b}", f"v_add_u32 v{CA+12+b}, s{sT3}, v{CA+4+b}"]
    wft = {}
    def w_reads(n):
        j, ks = n >> 2, n & 3
        if j < 2: return
        pos = POS[j]; hi = pos >= 65536; off = pos & 0xffff
        if ks == 0: A.wait(vm=A.token(f"R{j}"))
        for dts in range(2):
            t = WF[n % 4] + 4 * dts
            if j < 7:
                ar = (TAhi if hi else TAlo) + dts
                A.ds(f"ds_read_b64_tr_b16 a[{t}:{t+1}], v{ar} offset:{off + 16*ks*128}")
                wft[n] = A.ds(f"ds_read_b64_tr_b16 a[{t+2}:{t+3}], v{ar} offset:{off + (16*ks+8)*128}")
            else:
                ar = CA + (8 if hi else 0) + 4 * dts + ks
                wft[n] = A.ds(f"ds_read_b128 a[{t}:{t+3}], v{ar} offset:{off}")
    def gz_load():
        e(f"s_lshl_b32 s{sT0}, s{sM2}, 8\ns_lshl_b32 s{sT1}, s{sW}, 13\ns_add_u32 s{sT0}, s{sT0}, s{sT1}\ns_add_u32 s{sT0}, s{sT0}, {WS_GZ:#x}\nv_lshlrev_b32 v1, 2, v0")
        T["gz"] = A.vmem(f"buffer_load_dword v{VZ}, v1, {WS}, s{sT0} offen sc1", heavy=False)
    z = VZ
    G1 = [lambda: A.wait(vm=T["gz"]), f"v_cvt_pk_bf16_f32 v{z}, v{z}, v{z}", f"v_lshlrev_b32 v{z}, 16, v{z}", f"v_mul_f32 v{z}, 0xbfb8aa3b, v{z}", f"v_exp_f32 v{z}, v{z}", f"v_add_f32 v{z}, 1.0, v{z}", f"v_rcp_f32 v{z}, v{z}",
          f"v_cvt_pk_bf16_f32 v{z}, v{z}, v{z}", f"v_lshlrev_b32 v{z}, 16, v{z}", f"v_sub_f32 v142, 1.0, v{z}", "v_cvt_pk_bf16_f32 v142, v142, v142", "v_lshlrev_b32 v142, 16, v142",
          f"v_max_f32 v{z}, 0x21800000, v{z}", f"v_rcp_f32 v153, v{z}", f"s_lshl_b32 s{sT2}, s{sW}, 9\ns_add_u32 s{sT2}, s{sT2}, {L_RG}\nv_lshl_add_u32 v154, v0, 2, s{sT2}", "v_mul_f32 v142, v142, v153"]
    def rg_write():
        A.ds("ds_write_b32 v154, v142"); T["rgw"] = A.ds(f"ds_write_b32 v154, v{z} offset:256")
    def rg_read(i):
        def f():
            if i == 0: A.wait(lg=T["rgw"])
            for q in range(4):
                dst = [32, 48, GV][i] + 4 * q
                T["rg"] = A.ds(f"ds_read_b128 v[{dst}:{dst+3}], v{[143, 144, 143][i]} offset:{(256 if i == 2 else 0) + 16*q}")
        return f
    G1 += [rg_write, f"s_lshr_b32 s{sT3}, s{sW}, 1\ns_lshl_b32 s{sT3}, s{sT3}, 7\ns_add_u32 s{sT2}, s{sT2}, s{sT3}\nv_lshrrev_b32 v143, 5, v0", f"v_lshl_add_u32 v143, v143, 6, s{sT2}", "v_xor_b32 v144, 128, v143",
           rg_read(0), rg_read(1), rg_read(2)]
    A.force_q(0, 4)
    for n in range(40):
        j, ks = n >> 2, n & 3
        if n == FST: A.wait(vm=T["hs"]); flag_store(WS_FS); stamp("FS stored")
        if n == F1S - 1: T["f1"] = flag_load(WS_F1)
        if n == FSS - 1: T["fs"] = flag_load(WS_FS)
        if n == F1S:
            flag_wait(T["f1"], WS_F1, "f1"); stamp("F1 seen")
            for k in range(16, min(n + HD, 28)): h_item(k)
            A.force_q(0, 4)
            gz_load()
        if n == F1S + 4: F.extend(G1)
        if n == 2: F.extend(XL)
        if n == FSS:
            flag_wait(T["fs"], WS_FS, "fs"); stamp("FS seen")
            for k in range(28, n + HD): h_item(k)
            A.force_q(0, 4)
        if n == 28:
            assert not F
            A.wait(vm=T["xv"], lg=T["rg"])
            for b in range(4):
                for v in range(16):
                    e(f"v_mul_f32 v{ACC2+16*b+v}, v{ACC2+16*b+v}, v{(32 if b < 2 else 48)+v}")
                A.force_q(0, 1)
            for v in range(16): e(f"v_dot2c_f32_bf16 v{ACC2+v}, v{XV+v}, v152")
        A.wait(vm=A.token(f"H{n}"), lg=(w2r_last[j] if j < 2 else wft[n]))
        if n % 2 == 0: stamp(f"s{n}")
        for b in ((0, 1, 2, 3) if n != 28 else (3, 2, 1, 0)):
            bt, bd = b >> 1, b & 1
            h = HB + 8 * (n % HD) + 4 * bt; acc = ACC2 + 16 * b
            t = WRL[j][2 * ks + bd] if j < 2 else WF[n % 4] + 4 * bd
            e(f"v_mfma_f32_32x32x16_bf16 v[{acc}:{acc+15}], a[{h}:{h+3}], a[{t}:{t+3}], " + ("0" if n == 0 else f"v[{acc}:{acc+15}]"))
            if b == 0 and ks == 3 and 2 <= j <= 6: A.push(f"R{j+4}", ring_item(j + 4))
            if b == 0: w_reads(n + 2)
            if b == 3 and n >= 38: w_reads(n + 4)
            if b in (0, 2): A.force_q(0, 1 if len(A.q[0]) <= 2 else 2)
            if b == 1 or (b == 3 and not A.q[0]): A.force_q(1, 1)
            fill(3)
        k = n + HD
        if k < 44 and (k < 16 or (k < 28 and n >= F1S) or n >= FSS): h_item(k)
    RO = {1: PB, 2: PB + 4096, 3: PA + 8192 - 8192}
    RO = {1: 8192, 2: 8192 + 4096, 3: None}
    e(f"s_add_u32 s{sT0}, s{sM0}, 65536\nv_add_u32 v1, s{sT0}, v31\nv_add_u32 v8, s{sM8}, v31")
    e("v_xor_b32 v3, 0x4000, v1\nv_xor_b32 v4, 0x8000, v1\nv_xor_b32 v5, 0x6000, v8")
    e(f"v_lshrrev_b32 v6, 5, v0\nv_lshlrev_b32 v6, 15, v6\nv_and_b32 v7, 31, v0\nv_lshl_add_u32 v6, v7, 2, v6\ns_lshl_b32 s{sXB}, s{sXB}, 1")
    A.wait(vm=A.token("H43"), lg=wft[43])
    stamp("s40")
    assert not A.q[0] and not A.q[1]
    def red_write(b, q):
        r = ACC2 + 16 * b + 4 * q
        if b < 3: A.ds(f"ds_write_b128 v1, v[{r}:{r+3}] offset:{RO[b] + q*1024}")
        else: A.ds(f"ds_write_b128 v8, v[{r}:{r+3}] offset:{q*1024}")
    prev = None
    for b in (1, 2, 3, 0):
        bt, bd = b >> 1, b & 1
        for n in range(40, 44):
            h = HB + 8 * (n % HD) + 4 * bt; acc = ACC2 + 16 * b; t = WF[n % 4] + 4 * bd
            e(f"v_mfma_f32_32x32x16_bf16 v[{acc}:{acc+15}], a[{h}:{h+3}], a[{t}:{t+3}], v[{acc}:{acc+15}]")
            if prev is not None and n == 42: e("s_nop 7")
            if prev is not None and n >= 42: red_write(prev, 2 * (n - 42)); red_write(prev, 2 * (n - 42) + 1)
        prev = b
    stamp("mfma done")
    A.wait(lg=A.lg)
    e("s_barrier")
    rt = {}
    for q in range(4):
        for b in (1, 2, 3):
            r = 128 + 16 * (b - 1) + 4 * q
            rt[(q, b)] = A.ds(f"ds_read_b128 v[{r}:{r+3}], v{2+b} offset:{(RO[b] or 0) + q*1024}")
    for q in range(4):
        A.wait(lg=rt[(q, 3)])
        for i in range(4):
            v = 4 * q + i
            e(f"v_add_f32 v{128+v}, v{128+v}, v{144+v}\nv_add_f32 v{ACC2+v}, v{ACC2+v}, v{160+v}\nv_add_f32 v{ACC2+v}, v{ACC2+v}, v{128+v}\nv_mul_f32 v{ACC2+v}, v{ACC2+v}, v{GV+v}")
            if v % 2 == 0 and v > 0: e(f"s_add_u32 s{sXB}, s{sXB}, 4096")
            A.L.append(f"buffer_store_dword v{ACC2+v}, v6, {OUT}, s{sXB} offen offset:{(v%2)*2048}" + ["", " sc1", " nt", " sc0 sc1"][OUTF])
    if stamps:
        e("s_waitcnt vmcnt(0)")
        stamp("end")
        e("s_memrealtime s[34:35]\ns_waitcnt lgkmcnt(0)")
        e(f"s_lshl_b32 s{sT0}, s2, 2\ns_add_u32 s{sT0}, s{sT0}, s{sW}\ns_lshl_b32 s{sT0}, s{sT0}, 8\ns_add_u32 s{sT0}, s{sT0}, {WS_STAMP:#x}\nv_mov_b32 v1, 0")
        n = len(stamp_names); assert n <= 62
        for i in range(max(0, n - len(stamp_regs)), n): e(f"v_writelane_b32 v255, s{stamp_regs[i % len(stamp_regs)]}, {i}")
        e(f"v_subrev_u32 v255, s14, v255\ns_andn2_b32 s100, s100, 1\ns_nop 1\nv_writelane_b32 v255, s100, 62\nv_writelane_b32 v255, s34, 63\nv_lshlrev_b32 v1, 2, v0")
        e(f"buffer_store_dword v255, v1, {WS}, s{sT0} offen")
    e("L_end:\ns_endpgm")
    body = A.text()
    hdr = HEADER + f"; @launch grid=(256,1,1) block=(256,1,1) lds={LDS_BYTES}\n"
    if stamps: hdr += "; STAMPS: " + " | ".join(stamp_names) + "\n"
    hdr += '.amdgcn_target "amdgcn-amd-amdhsa--gfx950"\n.text\n' + f".globl {KNAME}\n.p2align 8\n.type {KNAME},@function\n"
    tail = f""".section .rodata,"a"
.p2align 6
.amdhsa_kernel {KNAME}
  .amdhsa_next_free_vgpr 512
  .amdhsa_next_free_sgpr 102
  .amdhsa_accum_offset 256
  .amdhsa_group_segment_fixed_size 0
  .amdhsa_kernarg_size 128
  .amdhsa_user_sgpr_count 2
  .amdhsa_user_sgpr_kernarg_segment_ptr 1
  .amdhsa_system_sgpr_workgroup_id_x 1
.end_amdhsa_kernel
"""
    return hdr + body + tail

if __name__ == "__main__":
    out = sys.argv[1] if len(sys.argv) > 1 else "k.s"
    kw = {}
    for a in sys.argv[2:]:
        k, v = a.split("="); kw[k] = int(v)
    open(out, "w").write(gen(**kw))
```
